```python
import torch

def _softmax(x, axis=-1):
    return torch.softmax(x, dim=axis)
def _gelu(x):
    return torch.nn.functional.gelu(x, approximate="tanh")
def _silu(x):
    return torch.nn.functional.silu(x)
def _sigmoid(x):
    return torch.sigmoid(x)
def _layernorm(x, axis=-1, eps=1e-5):
    m = x.mean(dim=axis, keepdim=True)
    v = x.var(dim=axis, keepdim=True, unbiased=False)
    return (x - m) / torch.sqrt(v + eps)
def _scatter_add(tgt, idx, src, axis=0):
    return tgt.clone().index_add_(axis, idx, src)
def _segment_sum(src, seg, n):
    out = torch.zeros((n,) + src.shape[1:], dtype=src.dtype)
    return out.index_add_(0, seg, src)
def _pad(x, pw):
    flat = tuple(v for pair in reversed(pw) for v in pair)
    return torch.nn.functional.pad(x, flat)

kernel_name = 'recurrent_scan__mha_block_cached__mixer_s_mlp__prompt'

def setup_inputs():

    _w = (lambda a: (lambda t: t.to(torch.bfloat16) if t.is_floating_point() else t)(torch.as_tensor(a)))
    def _A_setup():
        B, Sq, D = 1, 2048, 640
        H, Sk, Dh = 32, 2048, 192
        return {
            "x": _w((lambda *s: torch.randn(*s, dtype=torch.bfloat16) * 0.05)(B, Sq, D)),
            "k_cache": _w((lambda *s: torch.randn(*s, dtype=torch.bfloat16) * 0.8)(B, H, Sk, Dh)),
            "v_cache": _w((lambda *s: torch.randn(*s, dtype=torch.bfloat16) * 0.8)(B, H, Sk, Dh)),
            "wq": _w((lambda *s: torch.randn(*s, dtype=torch.bfloat16) * 0.8)(D, H * Dh) * (D ** -0.5)),
            "wo": _w((lambda *s: torch.randn(*s, dtype=torch.bfloat16) * 0.8)(H * Dh, D) * ((H * Dh) ** -0.5)),
        }
    _A_in = _A_setup()

    def _B_setup():
        B, S, D, F = 1, 2048, 640, 1536
        return {
            "x":  _w((lambda *s: torch.randn(*s, dtype=torch.bfloat16) * 0.05)(B, S, D)),
            "w1": _w((lambda *s: torch.randn(*s, dtype=torch.bfloat16) * 3.2)(D, D) * (D ** -0.5)),
            "w2": _w((lambda *s: torch.randn(*s, dtype=torch.bfloat16) * 3.2)(D, D) * (D ** -0.5)),
            "w3": _w((lambda *s: torch.randn(*s, dtype=torch.bfloat16) * 3.2)(D, F) * (D ** -0.5)),
            "w4": _w((lambda *s: torch.randn(*s, dtype=torch.bfloat16) * 3.2)(F, D) * (F ** -0.5)),
        }
    _B_in = _B_setup()

    return {
        "A_x": _A_in["x"],
        "A_k_cache": _A_in["k_cache"],
        "A_v_cache": _A_in["v_cache"],
        "A_wq": _A_in["wq"],
        "A_wo": _A_in["wo"],
        "B_x": _B_in["x"],
        "B_w1": _B_in["w1"],
        "B_w2": _B_in["w2"],
        "B_w3": _B_in["w3"],
        "B_w4": _B_in["w4"],
    }

def reference(A_x, A_k_cache, A_v_cache, A_wq, A_wo, B_x, B_w1, B_w2, B_w3, B_w4):
    def _A_ref(x, k_cache, v_cache, wq, wo):
        B, Sq, D = x.shape
        H, Dh = 32, 192
        q = (lambda x, *d: x.permute(*d))((x @ wq).reshape(B, Sq, H, Dh), 0, 2, 1, 3)
        scores = torch.einsum("bhqd,bhkd->bhqk", q, k_cache) * (Dh ** -0.5)
        p = _softmax(scores, axis=-1)
        o = torch.einsum("bhqk,bhkd->bhqd", p, v_cache)
        return (lambda x, *d: x.permute(*d))(o, 0, 2, 1, 3).reshape(B, Sq, H * Dh) @ wo

    def _B_ref(x, w1, w2, w3, w4):
        B, S, D = x.shape
        h = _gelu(_layernorm(x, axis=-1) @ w1)
        c = D // 4
        g0 = _pad(h[:, :, 0*c:1*c], ((0, 0), (1, 0), (0, 0)))[:, :S, :]
        g1 = _pad(h[:, :, 1*c:2*c], ((0, 0), (0, 1), (0, 0)))[:, 1:, :]
        g2 = _pad(h[:, :, 2*c:3*c], ((0, 0), (2, 0), (0, 0)))[:, :S, :]
        g3 = _pad(h[:, :, 3*c:   ], ((0, 0), (0, 2), (0, 0)))[:, 2:, :]
        hs = torch.concatenate([g0, g1, g2, g3], axis=-1) @ w2
        x1 = x + hs
        h2 = _gelu(_layernorm(x1, axis=-1) @ w3) @ w4
        return x1 + h2

    x = A_x
    xn = _layernorm(x, axis=-1)
    s = _A_ref(xn, A_k_cache, A_v_cache, A_wq, A_wo)
    g = _silu(_B_ref(xn, B_w1, B_w2, B_w3, B_w4))
    return x + s * g
```

```python
import re

def v(b, n=1):
    return f"v{b}" if n == 1 else f"v[{b}:{b+n-1}]"
def a(b, n=1):
    return f"a{b}" if n == 1 else f"a[{b}:{b+n-1}]"
def s(b, n=1):
    return f"s{b}" if n == 1 else f"s[{b}:{b+n-1}]"

class Asm:
    def __init__(self):
        self.L = []
    def __call__(self, x):
        if isinstance(x, (list, tuple)):
            for y in x: self(y)
        else:
            self.L.append(x)
    def label(self, n):
        self.L.append(n + ":")
    def c(self, t):
        self.L.append("; " + t)
    def text(self):
        out = []
        for l in self.L:
            if l.endswith(":") or l.startswith(".") or l.startswith(";"):
                out.append(l)
            else:
                out.append("  " + l)
        return "\n".join(out) + "\n"

def mfma(d, A, B, C=None):
    return f"v_mfma_f32_16x16x32_bf16 {d}, {A}, {B}, {C if C is not None else d}"

def kdesc(name, vgpr=512, accum=256, sgpr=102):
    return "\n".join([".p2align 6", f".amdhsa_kernel {name}", f"  .amdhsa_next_free_vgpr {vgpr}",
        f"  .amdhsa_next_free_sgpr {sgpr}", f"  .amdhsa_accum_offset {accum}",
        "  .amdhsa_group_segment_fixed_size 0", "  .amdhsa_kernarg_size 104",
        "  .amdhsa_user_sgpr_count 2", "  .amdhsa_user_sgpr_kernarg_segment_ptr 1",
        "  .amdhsa_system_sgpr_workgroup_id_x 1", ".end_amdhsa_kernel"]) + "\n"

_reg = re.compile(r"\b([vas])(\d+)\b|\b([vas])\[(\d+):(\d+)\]")
def regs_of(op):
    out = set()
    for m in _reg.finditer(op):
        if m.group(1):
            out.add((m.group(1), int(m.group(2))))
        else:
            for i in range(int(m.group(4)), int(m.group(5)) + 1):
                out.add((m.group(3), i))
    if re.search(r"\bvcc\b", op): out.add(("vcc", 0))
    if re.search(r"\bm0\b", op): out.add(("m0", 0))
    if re.search(r"\bexec\b", op): out.add(("exec", 0))
    return out

TRANS = ("v_exp_f32", "v_log_f32", "v_rcp_f32", "v_rsq_f32", "v_sqrt_f32", "v_sin_f32", "v_cos_f32")

class I:
    def __init__(self, text):
        self.text = text
        t = text.split(";")[0].strip()
        p = t.split(None, 1)
        self.op = p[0]
        ops = [x.strip() for x in p[1].split(",")] if len(p) > 1 else []
        self.ops = ops
        op = self.op
        self.w = set(); self.r = set()
        self.kind = "other"
        self.states = 1
        if op == "s_nop":
            self.states = int(ops[0], 0) + 1; self.kind = "nop"
        elif op.startswith("v_mfma"):
            self.kind = "mfma"
            self.w = regs_of(ops[0]); self.A = regs_of(ops[1]); self.B = regs_of(ops[2]); self.C = regs_of(ops[3])
            self.r = self.A | self.B | self.C
            self.passes = 4 if "16x16x32" in op else 8
        elif op.startswith("v_cmp"):
            self.kind = "valu"
            self.w = regs_of(ops[0]); self.r = set().union(*[regs_of(x) for x in ops[1:]])
            if op.startswith("v_cmpx"): self.w.add(("exec", 0))
        elif op.startswith("v_permlane") and "swap" in op:
            self.kind = "valu"; self.perm = True
            self.w = regs_of(ops[0]) | regs_of(ops[1]); self.r = set(self.w)
        elif op.startswith("v_"):
            self.kind = "valu"
            self.w = regs_of(ops[0]); self.r = set().union(*[regs_of(x) for x in ops[1:]]) if len(ops) > 1 else set()
            if op.startswith(("v_add_co", "v_sub_co", "v_addc_co", "v_subb_co", "v_div_scale")):
                self.w |= regs_of(ops[1])
            if op.startswith(("v_fmac", "v_mac", "v_dot2c")): self.r |= self.w
            if "dpp" in t or "row_" in t or "quad_perm" in t: self.dpp = True; self.r |= self.w
        elif op.startswith("ds_"):
            self.kind = "ds"
            if op.startswith(("ds_read", "ds_bpermute", "ds_permute", "ds_swizzle")):
                self.w = regs_of(ops[0]); self.r = set().union(*[regs_of(x) for x in ops[1:]])
            else:
                self.r = set().union(*[regs_of(x) for x in ops])
        elif op.startswith(("buffer_", "global_", "flat_")):
            self.kind = "vmem"
            islds = re.search(r"\blds\b", t) is not None or "load_lds" in op
            if "load" in op and not islds:
                self.w = regs_of(ops[0]); self.r = set().union(*[regs_of(x) for x in ops[1:]])
            elif op.startswith(("buffer_wbl2", "buffer_inv")):
                pass
            else:
                self.r = set().union(*[regs_of(x) for x in ops])
                if "atomic" in op and re.search(r"\bsc0\b", t): self.w = regs_of(ops[0])
            if islds: self.r.add(("m0", 0)); self.lds = True
            if "store" in op and ("x4" in op or "x3" in op):
                self.wide_data = regs_of(ops[0]) if op.startswith("buffer") else regs_of(ops[1])
        elif op.startswith("s_"):
            self.kind = "salu"
            if op.startswith(("s_cmp", "s_cbranch", "s_branch", "s_waitcnt", "s_barrier", "s_endpgm", "s_setprio", "s_sleep", "s_bitcmp")):
                self.r = set().union(*[regs_of(x) for x in ops]) if ops else set()
            else:
                self.w = regs_of(ops[0]); self.r = set().union(*[regs_of(x) for x in ops[1:]]) if len(ops) > 1 else set()
                if "saveexec" in op: self.w.add(("exec", 0))

def need(p, c):
    n = 0
    vw = {x for x in p.w if x[0] in "va"}
    if p.kind == "mfma":
        ps = p.passes
        tab_v = {2: 5, 4: 8, 8: 12, 16: 20}[ps]
        tab_c = {2: 4, 4: 6, 8: 10, 16: 18}[ps]
        tab_war = {2: 1, 4: 3, 8: 7, 16: 15}[ps]
        if c.kind == "mfma":
            if (c.A | c.B) & p.w: n = max(n, tab_v)
            if c.C & p.w and c.C != p.w: n = max(n, tab_c)
            if c.w & p.w and not (c.C == p.w):
                n = max(n, tab_c)
        elif c.kind == "valu":
            if (c.r | c.w) & p.w: n = max(n, tab_v)
            if c.w & p.C: n = max(n, tab_war)
        elif c.kind in ("ds", "vmem"):
            if (c.r | c.w) & p.w: n = max(n, tab_v)
    if p.kind == "valu":
        if c.kind == "mfma" and c.r & vw: n = max(n, 2)
        if c.kind == "mfma" and ("exec", 0) in p.w: n = max(n, 4)
        if c.kind == "valu":
            if p.op.startswith(TRANS) and not c.op.startswith(TRANS) and c.r & vw: n = max(n, 1)
            if getattr(c, "perm", False) and c.r & vw: n = max(n, 2)
            if getattr(c, "dpp", False) and c.r & vw: n = max(n, 2)
            if c.op.startswith(("v_readlane", "v_readfirstlane")) and c.r & vw: n = max(n, 1)
            sw = {x for x in p.w if x[0] in ("s", "vcc")}
            if sw & c.r:
                n = max(n, 4 if c.op.startswith(("v_readlane", "v_writelane", "v_div_fmas")) else 2)
            if ("exec", 0) in p.w:
                if c.op.startswith(("v_readlane", "v_readfirstlane", "v_writelane", "v_permlane")): n = max(n, 4)
                if getattr(c, "dpp", False): n = max(n, 5)
        if c.kind == "vmem":
            sw = {x for x in p.w if x[0] == "s"}
            if sw & c.r: n = max(n, 5)
        if c.kind == "salu":
            sw = {x for x in p.w if x[0] in ("s", "vcc")}
            if sw & c.r: n = max(n, 1)
    if p.kind == "salu" and ("m0", 0) in p.w and getattr(c, "lds", False): n = max(n, 1)
    if p.kind == "vmem" and hasattr(p, "wide_data"):
        if c.w & p.wide_data and c.kind != "vmem" and c.kind != "ds": n = max(n, 2)
    return n

def check_linear(lines, name=""):
    ins = []
    for l in lines:
        t = l.strip()
        if not t or t.startswith((";", ".")) or t.endswith(":"): continue
        ins.append(I(t))
    bad = 0
    for j, c in enumerate(ins):
        dist = 0
        for i in range(j - 1, max(-1, j - 24), -1):
            p = ins[i]
            n = need(p, c)
            if n > dist:
                print(f"HAZARD[{name}] need {n} have {dist}: '{p.text}' -> '{c.text}' (idx {i}->{j})")
                bad += 1
            dist += p.states
            if dist >= 21: break
    return bad

def fix_hazards(lines, name="", verbose=False):
    out = []
    hist = []
    nins = 0
    for l in lines:
        t = l.strip()
        if not t or t.startswith((";", ".")) or t.endswith(":"):
            out.append(l); continue
        c = I(t)
        dist = 0; short = 0
        for p in reversed(hist[-24:]):
            n = need(p, c)
            if n - dist > short:
                short = n - dist
                why = p.text
            dist += p.states
            if dist >= 21: break
        if short > 0:
            if verbose: print(f"[{name}] nop {short} before '{t}' (producer '{why}')")
            nop = f"s_nop {short-1}"
            out.append(nop); hist.append(I(nop)); nins += 1
        out.append(l); hist.append(c)
    return out, nins

def cost(x):
    op = x.split()[0]
    if op.startswith(TRANS): return 2
    if op.startswith("s_"): return 0
    return 1

def weave(mf, fill):
    out = []
    for t, m in enumerate(mf):
        out.append(m)
        f = fill.get(t, [])
        sc = [x for x in f if x.startswith("s_")]
        ve = [x for x in f if not x.startswith("s_")]
        out += sc + ve
    return out

def greedy(mf, queue, fill=None, cap=2):
    fill = fill if fill is not None else {}
    qi = 0
    for t in range(len(mf)):
        used = sum(cost(x) for x in fill.get(t, []))
        while qi < len(queue) and queue[qi][0] <= t and used + cost(queue[qi][1]) <= cap:
            fill.setdefault(t, []).append(queue[qi][1]); used += cost(queue[qi][1]); qi += 1
    return fill, [x[1] for x in queue[qi:]]


def diag_store(n, sws, swv, base=60, off=None):
    from layout import WS_END
    o = []
    o.append("s_waitcnt lgkmcnt(0)")
    o.append(f"s_lshl_b32 s3, s2, 3")
    o.append(f"s_add_u32 s3, s3, {s(swv)}")
    o.append(f"s_lshl_b32 s3, s3, 7")
    o.append(f"s_add_u32 s3, s3, {WS_END if off is None else off}")
    o.append(f"v_mov_b32 v1, s3")
    for k in range(n):
        o.append(f"v_mov_b32 v2, {s(base+4*k)}")
        o.append(f"v_mov_b32 v3, {s(base+4*k+2)}")
        o.append(f"global_store_dwordx2 v1, v[2:3], {s(sws,2)} offset:{8*k}")
    o.append("s_waitcnt vmcnt(0)")
    return o
```

```python
from asmlib import *
from layout import *

SLOT = 24576
sK, sV, sW, sX, sO = 12, 16, 20, 24, 28
sWv, sHead, sQt, sWoff = 32, 33, 34, 35
sRa, sRb, sRc = 36, 37, 38
sKo, sVo, sT0, sT1, sCnt, sT2, sT3 = 39, 40, 41, 42, 43, 44, 45
sXo = 46
sDl = 50
vDma = 1
vKa = 4
vVa = 6
vL = 10
vT = 14
Fa, Fb = 16, 40
vQ = 64
vS = 96
vNm = 112
vP = (128, 160)
vFree = 192
aQ = 192

def Qf(ks, qb):
    return a(aQ + (ks*4+qb)*4, 4) if ks < 4 else v(vQ + ((ks-4)*4+qb)*4, 4)
def Oacc(dt, qb): return a((dt*4+qb)*4, 4)
def Qacc(dt, qb): return 64 + (dt*4+qb)*4
def Pf(buf, ks, qb): return vP[buf] + (qb*2+ks)*4

def q_mfmas(F, Sb, zeroC=False):
    out = []
    for qb in range(4):
        for ks in range(6):
            C = None
            if ks == 0: C = "0" if zeroC else v(vNm + 4*qb, 4)
            out.append(mfma(v(Sb + 4*qb, 4), v(F + 4*ks, 4), Qf(ks, qb), C))
    return out
def p_mfmas(F, i, buf):
    out = []
    for d in range(3):
        for qb in range(4):
            for ks in range(2):
                out.append(mfma(Oacc(3*i+d, qb), v(F + (d*2+ks)*4, 4), v(Pf(buf, ks, qb), 4)))
    return out
def k_reads(F, kb):
    return [f"ds_read_b128 {v(F+4*ks,4)}, {v(vKa + ks%2)} offset:{kb*6144 + (ks//2)*128}" for ks in range(6)]
def v_reads(F, i):
    out = []
    for d in range(3):
        dt = 3*i+d
        for ks in range(2):
            for hf in range(2):
                out.append(f"ds_read_b64_tr_b16 {v(F+(d*2+ks)*4+hf*2,2)}, {v(vVa + dt%4)} offset:{(2*ks+hf)*6144 + (dt//4)*128}")
    return out
def w_reads(F, p):
    out = []
    for d in range(3):
        j = 3*p+d
        for ks in range(2):
            for hf in range(2):
                out.append(f"ds_read_b64_tr_b16 {v(F+(d*2+ks)*4+hf*2,2)}, {v(vVa + (j//2)%2)} offset:{(2*ks+hf)*6144 + (j//4)*128 + 8*(j%2)}")
    return out
def softmax_groups(Sb, qb, blk, buf):
    s0 = Sb + 4*qb
    pd = Pf(buf, blk//2, qb) + 2*(blk % 2)
    l = v(vL + qb)
    e = lambda r: f"v_exp_f32 {v(s0+r)}, {v(s0+r)}"
    ad = lambda r: f"v_add_f32 {l}, {l}, {v(s0+r)}"
    cv = lambda h: f"v_cvt_pk_bf16_f32 {v(pd+h)}, {v(s0+2*h)}, {v(s0+2*h+1)}"
    return [[e(0)], [e(1)], [e(2)], [ad(0), cv(0)], [e(3)], [ad(1), ad(2)], [cv(1), ad(3)]]
PAT = [1,0,1,1,0,1,0,1,0,1,1,0]
def dma3(srd, soff, voff=vDma):
    return [f"buffer_load_dwordx4 {v(voff+j)}, {s(srd,4)}, {s(soff)} offen offset:{j*1024} lds" for j in range(3)]

def body(par):
    mf = []
    for i in range(4):
        mf += q_mfmas(Fa, vS) + p_mfmas(Fb, i, par)
    fill = {}
    busy = set()
    for i in range(-1, 4):
        blk = i % 4
        buf = par if i == -1 else 1 - par
        for qb in range(4):
            g = softmax_groups(vS, qb, blk, buf)
            k = 0
            for u in range(12):
                if PAT[u]:
                    t = 48*i + 10 + 12*qb + u
                    if 0 <= t < 192:
                        fill.setdefault(t, []).extend(g[k]); busy.add(t)
                    k += 1
    def free_gaps(lo, hi): return [t for t in range(lo, hi) if t not in busy]
    def put(t, xs):
        fill.setdefault(t, []).extend(xs)
        if any(not x.startswith("s_") for x in xs): busy.add(t)
    for i in range(4):
        b = 48*i
        fg = free_gaps(b, b+21)
        vr = v_reads(Fb, i)
        for n in range(6): put(fg[n], vr[2*n:2*n+2])
        if i == 3:
            put(fg[6], [f"s_sub_u32 {s(sDl)}, {s(sRc)}, {s(sRb)}",
                        f"v_add_u32 {v(vKa)}, {s(sDl)}, {v(vKa)}", f"v_add_u32 {v(vKa+1)}, {s(sDl)}, {v(vKa+1)}"])
            put(b+23, ["s_waitcnt vmcnt(12) lgkmcnt(0)", "s_barrier"])
        else:
            put(b+23, ["s_waitcnt lgkmcnt(0)"])
        fg = free_gaps(b+24, b+45)
        kr = k_reads(Fa, (i+1) % 4)
        for n in range(3): put(fg[n], kr[2*n:2*n+2])
        if i == 3:
            put(b+24, [f"s_mov_b32 {s(sT0)}, {s(sRa)}"]); put(b+25, [f"s_mov_b32 {s(sRa)}, {s(sRb)}"])
            put(b+26, [f"s_mov_b32 {s(sRb)}, {s(sRc)}"]); put(b+27, [f"s_mov_b32 {s(sRc)}, {s(sT0)}"])
            put(b+28, [f"s_add_u32 {s(sKo)}, {s(sKo)}, {SLOT}"]); put(b+29, [f"s_add_u32 {s(sVo)}, {s(sVo)}, {SLOT}"])
            m0 = [f"s_add_u32 {s(sT1)}, {s(sRa)}, {s(sWoff)}", f"s_add_u32 m0, {s(sT1)}, {SLOT}"]
            d = dma3(sK, sKo); pre = []
            put(b+17, [f"s_cmp_lt_u32 {s(sKo)}, {31*SLOT}"]); put(b+18, [f"s_cselect_b32 {s(sK+2)}, {s(sK+2)}, 0"])
            put(b+19, [f"s_cmp_lt_u32 {s(sVo)}, {31*SLOT}"]); put(b+20, [f"s_cselect_b32 {s(sV+2)}, {s(sV+2)}, 0"])
        elif i == 0:
            m0 = [f"s_add_u32 {s(sT1)}, {s(sRa)}, {s(sWoff)}", f"s_add_u32 m0, {s(sT1)}, {SLOT+3072}"]
            pre = [f"s_add_u32 {s(sT2)}, {s(sKo)}, 3072"]; d = dma3(sK, sT2)
        elif i == 1:
            m0 = [f"s_add_u32 m0, {s(sRb)}, {s(sWoff)}"]; pre = []; d = dma3(sV, sVo)
        else:
            m0 = [f"s_add_u32 {s(sT1)}, {s(sRb)}, {s(sWoff)}", f"s_add_u32 m0, {s(sT1)}, 3072"]
            pre = [f"s_add_u32 {s(sT2)}, {s(sVo)}, 3072"]; d = dma3(sV, sT2)
        sc = pre + m0
        g0 = fg[3]
        assert g0 - len(sc) >= b + 30 or i != 3, (g0, b)
        for n, x in enumerate(sc): put(g0 - len(sc) + n, [x])
        for n in range(3): put(fg[3+n], [d[n]])
        if i == 3:
            put(fg[6]-1, [f"s_sub_u32 {s(sDl)}, {s(sRc)}, {s(sRb)}"])
            put(fg[6], [f"v_add_u32 {v(vVa+m)}, {s(sDl)}, {v(vVa+m)}" for m in range(2)])
            put(fg[7], [f"v_add_u32 {v(vVa+m)}, {s(sDl)}, {v(vVa+m)}" for m in range(2, 4)])
        put(b+47, ["s_waitcnt lgkmcnt(0)"])
    for t in range(192):
        c_ = sum(cost(x) for x in fill.get(t, []))
        assert c_ <= 2, (t, fill[t])
    return mf, fill

def softmax_tail(buf):
    g = softmax_groups(vS, 3, 3, buf)
    k = 0; out = []
    for u in range(12):
        if PAT[u]:
            if -48 + 10 + 36 + u >= 0: out.append(g[k])
            k += 1
    return out

def gen_ka(name="ka_kernel", diag=False):
    A = Asm()
    def stamp(k):
        if diag: A([f"s_memtime {s(60+4*k,2)}", f"s_memrealtime {s(62+4*k,2)}"])
    A(".p2align 8"); A(f".type {name},@function"); A.label(name)
    A(["s_cmp_ge_u32 s2, 256", f"s_cbranch_scc1 {name}_end",
       f"s_load_dwordx4 s[4:7], s[0:1], {KA_K}", f"s_load_dwordx2 s[8:9], s[0:1], {KA_WQ}",
       f"s_load_dwordx2 s[10:11], s[0:1], {KA_WS}",
       "v_lshrrev_b32 v14, 6, v0", "v_and_b32 v0, 63, v0", f"v_readfirstlane_b32 {s(sWv)}, v14",
       f"s_and_b32 {s(sT0)}, s2, 7", f"s_lshl_b32 {s(sT0)}, {s(sT0)}, 2", f"s_bfe_u32 {s(sT1)}, s2, 0x20003",
       f"s_add_u32 {s(sHead)}, {s(sT0)}, {s(sT1)}", f"s_lshr_b32 {s(sQt)}, s2, 5",
       f"s_mul_i32 {s(sWoff)}, {s(sWv)}, 6144"])
    stamp(0)
    for j in range(3):
        A([f"v_add_u32 v14, {64*j}, v0", "v_mul_u32_u24 v14, 2731, v14", "v_lshrrev_b32 v14, 16, v14",
           "v_and_b32 v15, 6, v14", "v_xor_b32 v15, v15, v0", f"v_lshlrev_b32 {v(vDma+j)}, 4, v15",
           "v_mul_u32_u24 v14, 11904, v14", f"v_add_u32 {v(vL+j)}, v14, {v(vDma+j)}"])
    A(["v_lshlrev_b32 v8, 4, v0"])
    A("s_waitcnt lgkmcnt(0)")
    A([f"s_mul_i32 {s(sT0)}, {s(sHead)}, 786432", f"s_add_u32 {s(sT0)}, {s(sT0)}, {s(sWoff)}",
       f"s_add_u32 {s(sK)}, s4, {s(sT0)}", f"s_addc_u32 {s(sK+1)}, s5, 0",
       f"s_sub_u32 {s(sK+2)}, 786432, {s(sWoff)}", f"s_mov_b32 {s(sK+3)}, 0x20000",
       f"s_add_u32 {s(sV)}, s6, {s(sT0)}", f"s_addc_u32 {s(sV+1)}, s7, 0",
       f"s_sub_u32 {s(sV+2)}, 786432, {s(sWoff)}", f"s_mov_b32 {s(sV+3)}, 0x20000",
       f"s_mul_i32 {s(sT0)}, {s(sHead)}, 384", f"s_mul_i32 {s(sT1)}, {s(sWv)}, {16*12288}",
       f"s_add_u32 {s(sT0)}, {s(sT0)}, {s(sT1)}",
       f"s_add_u32 {s(sW)}, s8, {s(sT0)}", f"s_addc_u32 {s(sW+1)}, s9, 0",
       f"s_sub_u32 {s(sW+2)}, {640*12288}, {s(sT0)}", f"s_mov_b32 {s(sW+3)}, 0x20000",
       f"s_lshl_b32 {s(sT0)}, {s(sQt)}, 2", f"s_add_u32 {s(sT0)}, {s(sT0)}, {s(sWv)}",
       f"s_mul_i32 {s(sT1)}, {s(sT0)}, {4*20*1024}",
       f"s_add_u32 {s(sX)}, s10, {s(sT1)}", f"s_addc_u32 {s(sX+1)}, s11, 0",
       f"s_add_u32 {s(sX)}, {s(sX)}, {WS_XQ}", f"s_addc_u32 {s(sX+1)}, {s(sX+1)}, 0",
       f"s_mov_b32 {s(sX+2)}, {4*20*1024}", f"s_mov_b32 {s(sX+3)}, 0x20000",
       f"s_mul_i32 {s(sT1)}, {s(sT0)}, {4*192*1024}", f"s_mul_i32 {s(sT2)}, {s(sHead)}, 6144",
       f"s_add_u32 {s(sT1)}, {s(sT1)}, {s(sT2)}",
       f"s_add_u32 {s(sO)}, s10, {s(sT1)}", f"s_addc_u32 {s(sO+1)}, s11, 0",
       f"s_add_u32 {s(sO)}, {s(sO)}, {WS_O}", f"s_addc_u32 {s(sO+1)}, {s(sO+1)}, 0",
       f"s_mov_b32 {s(sO+2)}, {3*192*1024 + 6144}", f"s_mov_b32 {s(sO+3)}, 0x20000"])

    def x_loads(t):
        out = []
        for qb in range(4):
            out.append(f"s_mov_b32 {s(sXo+qb)}, {(qb*20+2*t)*1024}")
            for ks in range(2):
                out.append(f"buffer_load_dwordx4 {a((t%8)*32 + (ks*4+qb)*4, 4)}, v8, {s(sX,4)}, {s(sXo+qb)} offen offset:{ks*1024}")
        return out
    def tile_dma(n):
        slot = (n % 6) * SLOT
        if n < 10: srd, base, hi, vo = sW, n*64*12288, 8*12288, vL
        else:
            srd, idx = {10: (sK, 0), 11: (sK, 1), 12: (sV, 0), 13: (sK, 2), 14: (sV, 1)}[n]
            base, hi, vo = idx*SLOT, 3072, vDma
        out = []
        for h in range(2):
            out += [f"s_add_u32 m0, {s(sWoff)}, {slot + 3072*h}", f"s_mov_b32 {s(sT2+h)}, {base + hi*h}"]
            out += dma3(srd, sT2+h, vo)
        return out
    for t in range(4):
        A(tile_dma(t)); A(x_loads(t))
    A([
       "v_and_b32 v14, 15, v0", "v_mul_u32_u24 v4, 384, v14", "v_and_b32 v14, 6, v14", "v_lshrrev_b32 v15, 4, v0",
       "v_xor_b32 v14, v14, v15", "v_lshl_add_u32 v4, v14, 4, v4", f"v_add_u32 v4, {4*SLOT}, v4", "v_xor_b32 v5, 64, v4",
       "v_lshrrev_b32 v14, 2, v0", "v_mul_u32_u24 v6, 384, v14", "v_and_b32 v14, 6, v14", "v_and_b32 v15, 3, v0",
       "v_xor_b32 v14, v14, v15", "v_lshl_add_u32 v6, v14, 4, v6", "v_xor_b32 v7, 64, v6"])
    A(["s_waitcnt vmcnt(42)", "s_barrier"])
    stamp(1)
    A(w_reads(Fa, 0))
    A("s_waitcnt lgkmcnt(0)")
    grp = lambda n: 14 if n < 10 else 6
    def conv(dt):
        out = []
        ks, h = dt // 2, dt % 2
        for qb in range(4):
            src = Qacc(dt, qb)
            for u in range(2):
                if ks < 4:
                    out.append(f"v_cvt_pk_bf16_f32 {v(vT+u)}, {v(src+2*u)}, {v(src+2*u+1)}")
                else:
                    out.append(f"v_cvt_pk_bf16_f32 {v(vQ+((ks-4)*4+qb)*4+2*h+u)}, {v(src+2*u)}, {v(src+2*u+1)}")
            if ks < 4:
                for u in range(2):
                    out.append(f"v_accvgpr_write_b32 {a(aQ+(ks*4+qb)*4+2*h+u)}, {v(vT+u)}")
        return out
    left = []
    for t in range(10):
        mf = []; fill = {}
        for p in range(4):
            F = Fa if p % 2 == 0 else Fb
            for d in range(3):
                for qb in range(4):
                    for ks in range(2):
                        C = "0" if (t == 0 and ks == 0) else None
                        mf.append(mfma(v(Qacc(3*p+d, qb), 4), v(F+(d*2+ks)*4, 4), a((t%8)*32+(ks*4+qb)*4, 4), C))
        for p in range(4):
            b = 24*p
            Fn = Fb if p % 2 == 0 else Fa
            if p < 3: rd = w_reads(Fn, p+1)
            elif t < 9: rd = w_reads(Fn, 0)
            else: rd = k_reads(Fn, 0)
            for n in range(0, len(rd), 2):
                fill.setdefault(b + n, []).extend(rd[n:n+2])
            if p == 2:
                outst = sum(grp(n) for n in range(t+2, t+5))
                fill.setdefault(b+23, []).extend([f"s_waitcnt vmcnt({outst}) lgkmcnt(0)", "s_barrier"])
                if t < 9:
                    dl = SLOT if (t+1) % 6 != 0 else -5*SLOT
                    fill.setdefault(b+21, []).extend([f"s_mov_b32 {s(sDl)}, {dl}", f"v_add_u32 v6, {s(sDl)}, v6", f"v_add_u32 v7, {s(sDl)}, v7"])
            else:
                fill.setdefault(b+23, []).append("s_waitcnt lgkmcnt(0)")
        q = tile_dma(t+4) + (x_loads(t+4) if t+4 < 10 else [])
        gaps = [g for g in range(1, 69, 2) if g % 24 < 21]
        gi = 0; pend = []
        for x in q:
            if x.startswith("s_"): pend.append(x)
            else:
                g = gaps[gi]; gi += 2
                for n, y in enumerate(pend): fill.setdefault(g - len(pend) + n + 1 if g - len(pend) + n + 1 >= 0 else 0, []).append(y)
                pend = []
                fill.setdefault(g+0, []).append(x)
        if t == 9:
            qq = []
            for dt in range(9):
                qq += [(8*dt + 8 + 5, x) for x in conv(dt)]
            fill, left = greedy(mf, qq, fill)
        A.c(f"qproj tile {t}")
        A(weave(mf, fill))
    A(left)
    for dt in range(9, 12): A(conv(dt))
    A(["v_lshrrev_b32 v14, 2, v0", "v_mul_u32_u24 v6, 384, v14", "v_and_b32 v14, 6, v14", "v_lshl_add_u32 v6, v14, 4, v6",
       "v_and_b32 v15, 3, v0", "v_lshl_add_u32 v6, v15, 3, v6",
       "v_xor_b32 v7, 32, v6", "v_xor_b32 v8, 64, v6", "v_xor_b32 v9, 0x60, v6"])
    for r in range(4): A(f"v_mov_b32 {v(vP[1]+r)}, 0")
    for r in range(4): A(f"v_mov_b32 {v(vL+r)}, 0")
    stamp(2)
    if diag: A("s_waitcnt lgkmcnt(0)")
    A.c("iteration -1")
    Sx = [vFree, vFree+16, vFree+32, vS]
    mf = q_mfmas(Fa, Sx[0], zeroC=True)
    vz = v(vP[1], 4)
    mf += [mfma(a(4*n, 4), vz, vz, "0") for n in range(48)]
    mf += q_mfmas(Fb, Sx[1]) + q_mfmas(Fa, Sx[2]) + q_mfmas(Fb, Sx[3])
    fill = {}
    def rd(g0, lst):
        for n in range(0, len(lst), 2): fill.setdefault(g0 + n//2, []).extend(lst[n:n+2])
    rd(0, k_reads(Fb, 1))
    g = 4
    for x in tile_dma(14):
        fill.setdefault(g, []).append(x)
        g += 1
    rd(24, k_reads(Fa, 2))
    fill.setdefault(71, []).append("s_waitcnt lgkmcnt(0)")
    rd(96, k_reads(Fb, 3))
    fill.setdefault(100, []).extend([f"v_add_u32 v4, {SLOT}, v4", f"v_add_u32 v5, {SLOT}, v5"])
    fill.setdefault(119, []).extend(["s_waitcnt vmcnt(12) lgkmcnt(0)", "s_barrier"])
    rd(120, k_reads(Fa, 0))
    fill.setdefault(121, []).append(f"s_mov_b32 {s(sRa)}, {2*SLOT}")
    fill.setdefault(122, []).append(f"s_mov_b32 {s(sRb)}, {4*SLOT}")
    fill.setdefault(123, []).append(f"s_mov_b32 {s(sRc)}, 0")
    fill.setdefault(124, []).append(f"s_mov_b32 {s(sKo)}, {3*SLOT}")
    fill.setdefault(125, []).append(f"s_mov_b32 {s(sVo)}, {2*SLOT}")
    fill.setdefault(126, []).append(f"s_add_u32 m0, {s(sWoff)}, {3*SLOT}")
    for n, x in enumerate(dma3(sK, sKo)): fill.setdefault(128+2*n, []).append(x)
    fill.setdefault(127, []).append(f"s_mov_b32 {s(sCnt)}, 0")
    q = []
    tA, tB = vFree+48, vFree+52
    for qb in range(4):
        s0 = Sx[0] + 4*qb
        q += [(6*qb+5+5, f"v_max3_f32 {v(tA+qb)}, {v(s0)}, {v(s0+1)}, {v(s0+2)}")]
        q += [(6*qb+5+5, f"v_max_f32 {v(tA+qb)}, {v(tA+qb)}, {v(s0+3)}")]
    for sw in ("v_permlane32_swap_b32", "v_permlane16_swap_b32"):
        for qb in range(4): q += [(0, f"v_mov_b32 {v(tB+qb)}, {v(tA+qb)}")]
        for qb in range(4): q += [(0, f"{sw} {v(tA+qb)}, {v(tB+qb)}")]
        for qb in range(4): q += [(0, f"v_max_f32 {v(tA+qb)}, {v(tA+qb)}, {v(tB+qb)}")]
    for qb in range(4):
        for r in range(4): q += [(0, f"v_sub_f32 {v(vNm+4*qb+r)}, 0, {v(tA+qb)}")]
    nmax = len(q)
    for qb in range(4):
        for r in range(4): q += [(0, f"v_sub_f32 {v(Sx[0]+4*qb+r)}, {v(Sx[0]+4*qb+r)}, {v(tA+qb)}")]
    tail = softmax_tail(0)
    for blk in range(4):
        for qb in range(4):
            gs = softmax_groups(Sx[blk], qb, blk, 0)
            if blk == 3 and qb == 3: gs = gs[:len(gs)-len(tail)]
            e0 = 0 if blk == 0 else 72 + 24*(blk-1) + 6*qb + 5 + 5
            for gg in gs: q += [(e0, x) for x in gg]
    fill, left = greedy(mf, q, fill)
    seq = weave(mf, fill)
    iw = max(i for i, x in enumerate(seq) if x.startswith("v_sub_f32") and f", 0, " in x)
    iu = min(i for i, x in enumerate(seq) if x.startswith("v_mfma") and v(vNm, 4) in x)
    assert iw < iu, (iw, iu)
    A(seq); A(left)
    stamp(3)
    A("s_waitcnt lgkmcnt(0)")
    pre_len = len(A.L)
    A(".p2align 6")
    A.label(f"{name}_loop")
    b0 = weave(*body(0)); b1 = weave(*body(1))
    A(b0)
    A([f"s_cmp_eq_u32 {s(sCnt)}, 15", f"s_cbranch_scc1 {name}_last"])
    A(b1)
    A([f"s_add_u32 {s(sCnt)}, {s(sCnt)}, 1", f"s_branch {name}_loop"])
    A.label(f"{name}_last")
    assert check_linear(b0 + b1 + b0, "loop") == 0
    A.c("iteration 31")
    stamp(4)
    A(v_reads(Fb, 0))
    for gg in softmax_tail(1): A(gg)
    tB = vFree
    for sw in ("v_permlane32_swap_b32", "v_permlane16_swap_b32"):
        for qb in range(4): A(f"v_mov_b32 {v(tB+qb)}, {v(vL+qb)}")
        for qb in range(4): A(f"{sw} {v(vL+qb)}, {v(tB+qb)}")
        for qb in range(4): A(f"v_add_f32 {v(vL+qb)}, {v(vL+qb)}, {v(tB+qb)}")
    for qb in range(4): A(f"v_rcp_f32 {v(vL+qb)}, {v(vL+qb)}")
    A("v_lshlrev_b32 v1, 4, v0")
    A("s_waitcnt lgkmcnt(0)")
    mf = []; fill = {}
    for i in range(4):
        mf += p_mfmas(Fb if i % 2 == 0 else Fa, i, 1)
        if i < 3:
            lst = v_reads(Fa if i % 2 == 0 else Fb, i+1)
            for n in range(0, 12, 2): fill.setdefault(24*i + n, []).extend(lst[n:n+2])
            fill.setdefault(24*i+23, []).append("s_waitcnt lgkmcnt(0)")
    q = []
    nb = 0
    for kk in range(6):
        for qb in range(4):
            T = vFree + 8 + (nb % 4)*12; nb += 1
            e0 = 8*(2*kk+1) + 2*qb + 1 + 5
            for h in range(2):
                for r in range(4):
                    q.append((e0, f"v_accvgpr_read_b32 {v(T+4*h+r)}, {a(((2*kk+h)*4+qb)*4+r)}"))
            for r in range(8): q.append((e0, f"v_mul_f32 {v(T+r)}, {v(T+r)}, {v(vL+qb)}"))
            for r in range(4): q.append((e0, f"v_cvt_pk_bf16_f32 {v(T+8+r)}, {v(T+2*r)}, {v(T+2*r+1)}"))
            q.append((e0, f"s_mov_b32 {s(sT0)}, {qb*192*1024 + (kk//4)*4096}"))
            q.append((e0, f"buffer_store_dwordx4 {v(T+8,4)}, v1, {s(sO,4)}, {s(sT0)} offen offset:{(kk%4)*1024}"))
    fill, left = greedy(mf, q, fill)
    A(weave(mf, fill)); A(left)
    if diag:
        stamp(5)
        A("s_waitcnt vmcnt(0)")
        stamp(6)
        A(diag_store(7, 10, sWv))
    A.label(f"{name}_end")
    A("s_endpgm")
    L, n = fix_hazards(A.L, "ka")
    A.L = L
    return A

if __name__ == "__main__":
    A = gen_ka()
    print(len(A.L))
```

```python
from asmlib import *
from layout import *
import struct, math

def f2u(x): return struct.unpack("<I", struct.pack("<f", x))[0]
CQ = math.log2(math.e) / math.sqrt(DH)
GK = 2*math.sqrt(2/math.pi)*math.log2(math.e)

def gelu_ops(z, t, sA, sB):
    o = []
    for zi, ti in zip(z, t): o.append(f"v_mul_f32 {v(ti)}, {v(zi)}, {v(zi)}")
    for zi, ti in zip(z, t): o.append(f"v_fma_f32 {v(ti)}, {v(ti)}, {s(sA)}, {sB}")
    for zi, ti in zip(z, t): o.append(f"v_mul_f32 {v(ti)}, {v(ti)}, {v(zi)}")
    for zi, ti in zip(z, t): o.append(f"v_exp_f32 {v(ti)}, {v(ti)}")
    for zi, ti in zip(z, t): o.append(f"v_add_f32 {v(ti)}, 1.0, {v(ti)}")
    for zi, ti in zip(z, t): o.append(f"v_rcp_f32 {v(ti)}, {v(ti)}")
    for zi, ti in zip(z, t): o.append(f"v_mul_f32 {v(zi)}, {v(zi)}, {v(ti)}")
    return o

def xlane_sum(regs, tmps, op="v_add_f32"):
    o = []
    for sw in ("v_permlane32_swap_b32", "v_permlane16_swap_b32"):
        for r, t in zip(regs, tmps): o.append(f"v_mov_b32 {v(t)}, {v(r)}")
        for r, t in zip(regs, tmps): o.append(f"{sw} {v(r)}, {v(t)}")
        for r, t in zip(regs, tmps): o.append(f"{op} {v(r)}, {v(r)}, {v(t)}")
    return o

def srd(A, d, base, off_sgpr=None, off_imm=0, size=0, size_sub=None):
    if off_sgpr is not None:
        A([f"s_add_u32 {s(d)}, {s(base)}, {s(off_sgpr)}", f"s_addc_u32 {s(d+1)}, {s(base+1)}, 0"])
    else:
        A([f"s_mov_b32 {s(d)}, {s(base)}", f"s_mov_b32 {s(d+1)}, {s(base+1)}"])
    if off_imm:
        A([f"s_add_u32 {s(d)}, {s(d)}, {off_imm}", f"s_addc_u32 {s(d+1)}, {s(d+1)}, 0"])
    if size_sub is not None: A(f"s_sub_u32 {s(d+2)}, {size}, {s(size_sub)}")
    else: A(f"s_mov_b32 {s(d+2)}, {size}")
    A(f"s_mov_b32 {s(d+3)}, 0x20000")

sWv, sMt, sNt, sRb = 32, 33, 34, 35
sT0, sT1, sT2, sT3 = 40, 41, 42, 43

def w80_dma_setup(A, vo):
    for j in range(5):
        A([f"v_add_u32 v14, {64*j}, v0", "v_mul_u32_u24 v15, 6554, v14", "v_lshrrev_b32 v15, 16, v15",
           "v_mul_u32_u24 v15, 1120, v15", f"v_lshl_add_u32 {v(vo+j)}, v14, 4, v15"])
        jj = j if j < 4 else 0
        if jj: A(f"v_subrev_u32 {v(vo+j)}, {1024*jj}, {v(vo+j)}")

def w80_dma(A, srdW, vo, nks, lds_base=0):
    A([f"s_mul_i32 {s(sT0)}, {s(sWv)}, 5120", f"s_mul_i32 {s(sT1)}, {s(sWv)}, {32*1280}"])
    if lds_base: A(f"s_add_u32 {s(sT0)}, {s(sT0)}, {lds_base}")
    for r in range(nks // 4):
        A(f"s_add_u32 m0, {s(sT0)}, {r*4*5120}")
        if r: A(f"s_add_u32 {s(sT1)}, {s(sT1)}, {4*32*1280}")
        else: A("s_nop 0")
        for j in range(4):
            A(f"buffer_load_dwordx4 {v(vo+j)}, {s(srdW,4)}, {s(sT1)} offen offset:{j*1024} lds")
        A(f"s_add_u32 m0, {s(sT0)}, {r*4*5120 + 4096}")
        A("s_nop 0")
        A(f"buffer_load_dwordx4 {v(vo+4)}, {s(srdW,4)}, {s(sT1)} offen lds")

def gemm80(A, vaddr, ring, acc, Bf, nks):
    steps = []
    for kp in range(nks // 2):
        for j in range(5):
            for u in range(2): steps.append((2*kp+u, j))
    N = len(steps); R = 10; PD = 7
    def rd(n):
        ks, j = steps[n]
        F = ring + 4*(n % R)
        off = ks*5120 + j*32
        va = vaddr
        if off >= 51200: off -= 51200; va += 1
        return [f"ds_read_b64_tr_b16 {v(F,2)}, {v(va)} offset:{off}", f"ds_read_b64_tr_b16 {v(F+2,2)}, {v(va)} offset:{off+2560}"]
    for n in range(PD): A(rd(n))
    for n in range(N):
        ks, j = steps[n]
        rem = min(PD - 1, N - 1 - n)
        A(f"s_waitcnt lgkmcnt({2*rem})")
        A(mfma(v(acc+4*j, 4), v(ring + 4*(n % R), 4), Bf(ks), "0" if ks == 0 else None))
        if n + PD < N: A(rd(n + PD))

def head80(A, name):
    A(".p2align 8"); A(f".type {name},@function"); A.label(name)
    A(["s_cmp_ge_u32 s2, 256", f"s_cbranch_scc1 {name}_end"])

def ids80(A):
    A(["v_lshrrev_b32 v14, 6, v0", "v_and_b32 v0, 63, v0", f"v_readfirstlane_b32 {s(sWv)}, v14",
       f"s_and_b32 {s(sT0)}, s2, 7", f"s_lshl_b32 {s(sT0)}, {s(sT0)}, 2", f"s_bfe_u32 {s(sT1)}, s2, 0x20003",
       f"s_add_u32 {s(sMt)}, {s(sT0)}, {s(sT1)}", f"s_lshr_b32 {s(sNt)}, s2, 5",
       f"s_lshl_b32 {s(sRb)}, {s(sMt)}, 2", f"s_add_u32 {s(sRb)}, {s(sRb)}, {s(sWv)}"])

def tr80_addr(A, va):
    A(["v_lshrrev_b32 v14, 2, v0", f"v_mul_u32_u24 {v(va)}, 160, v14", "v_and_b32 v15, 3, v0",
       f"v_lshl_add_u32 {v(va)}, v15, 3, {v(va)}", f"v_add_u32 {v(va+1)}, 51200, {v(va)}"])

def tile_off(A, dst, j):
    A([f"s_mul_i32 {s(dst)}, {s(sNt)}, 5", f"s_add_u32 {s(dst)}, {s(dst)}, {j}",
       f"s_and_b32 {s(sT3)}, {s(dst)}, 1", f"s_lshl_b32 {s(sT3)}, {s(sT3)}, 3",
       f"s_lshr_b32 {s(dst)}, {s(dst)}, 1", f"s_lshl_b32 {s(dst)}, {s(dst)}, 10", f"s_add_u32 {s(dst)}, {s(dst)}, {s(sT3)}"])

def gen_kb1(name="kb1_kernel", diag=False):
    A = Asm()
    def stamp(k):
        if diag: A([f"s_memtime {s(60+4*k,2)}", f"s_memrealtime {s(62+4*k,2)}"])
    head80(A, name)
    sXs, sW, sQ, sN, sHs = 12, 16, 20, 24, 28
    A([f"s_load_dwordx2 s[4:5], s[0:1], {KA_X}", f"s_load_dwordx2 s[6:7], s[0:1], {KA_W1}", f"s_load_dwordx2 s[10:11], s[0:1], {KA_WS}"])
    stamp(0)
    ids80(A)
    vo, va, ring, acc, X, LO = 1, 6, 16, 224, 64, 144
    w80_dma_setup(A, vo)
    A(["v_and_b32 v14, 15, v0", "v_mul_u32_u24 v8, 1280, v14", "v_lshrrev_b32 v15, 4, v0", "v_lshl_add_u32 v8, v15, 3, v8",
       "v_lshlrev_b32 v9, 4, v0"])
    A("s_waitcnt lgkmcnt(0)")
    A(f"s_mul_i32 {s(sT0)}, {s(sRb)}, {16*1280}")
    srd(A, sXs, 4, sT0, 0, 16*1280)
    for ks in range(20):
        for h in range(2):
            A(f"buffer_load_dwordx2 {v(X+4*ks+2*h,2)}, v8, {s(sXs,4)}, 0 offen offset:{ks*64+h*32}")
    A(f"s_mul_i32 {s(sT0)}, {s(sNt)}, 160")
    srd(A, sW, 6, sT0, 0, 640*1280, sT0)
    w80_dma(A, sW, vo, 20)
    A(f"s_mul_i32 {s(sT0)}, {s(sRb)}, {20*1024}")
    srd(A, sQ, 10, sT0, WS_XQ, 20*1024)
    srd(A, sN, 10, sT0, WS_XN, 20*1024)
    srd(A, sHs, 10, None, WS_HS, 128*20*1024)
    tr80_addr(A, va)
    A([f"s_lshl_b32 {s(sT0)}, s2, 7", f"s_add_u32 {s(sT0)}, {s(sT0)}, {WS_FLAG}", f"v_mov_b32 v14, {s(sT0)}", "v_mov_b32 v15, 0",
       "global_store_dword v14, v15, s[10:11]"])
    A([f"s_lshr_b32 {s(sT0)}, {s(sNt)}, 2", f"s_add_u32 {s(sT0)}, {s(sT0)}, 1",
       f"s_sub_u32 {s(sT1)}, 0, {s(sT0)}", f"s_bitcmp1_b32 {s(sNt)}, 1", f"s_cselect_b32 {s(sT0)}, {s(sT1)}, {s(sT0)}",
       f"s_lshl_b32 {s(sT1)}, {s(sRb)}, 4", f"s_add_u32 {s(sT0)}, {s(sT0)}, {s(sT1)}",
       "v_and_b32 v14, 15, v0", f"v_add_u32 v14, {s(sT0)}, v14",
       f"s_movk_i32 {s(sT1)}, 2048", f"v_cmp_gt_u32 {s(44,2)}, {s(sT1)}, v14",
       "v_and_b32 v14, 2047, v14", "v_lshrrev_b32 v15, 4, v14", "v_mul_u32_u24 v10, 20480, v15",
       "v_and_b32 v14, 15, v14", "v_lshl_add_u32 v10, v14, 4, v10",
       "v_and_b32 v14, 48, v0", "v_lshl_add_u32 v10, v14, 4, v10"])
    A("s_waitcnt vmcnt(26)")
    stamp(1)
    for j in range(80):
        A([f"v_lshlrev_b32 {v(LO+j)}, 16, {v(X+j)}", f"v_and_b32 {v(X+j)}, 0xffff0000, {v(X+j)}"])
    sm = 16
    A([f"v_pk_add_f32 {v(sm+2*u,2)}, {v(X+4*u,2)}, {v(X+4*u+2,2)}" for u in range(4)])
    for j in range(8, 80):
        A(f"v_pk_add_f32 {v(sm+2*(j%4),2)}, {v(sm+2*(j%4),2)}, {v(X+2*j,2)}")
    A([f"v_pk_add_f32 {v(sm,2)}, {v(sm,2)}, {v(sm+2,2)}", f"v_pk_add_f32 {v(sm+4,2)}, {v(sm+4,2)}, {v(sm+6,2)}",
       f"v_pk_add_f32 {v(sm,2)}, {v(sm,2)}, {v(sm+4,2)}", f"v_add_f32 {v(sm)}, {v(sm)}, {v(sm+1)}"])
    A(xlane_sum([sm], [sm+1]))
    A([f"v_mul_f32 {v(sm+8)}, {hex(f2u(-1.0/640))}, {v(sm)}", f"v_mov_b32 {v(sm+9)}, {v(sm+8)}"])
    for j in range(80):
        A(f"v_pk_add_f32 {v(X+2*j,2)}, {v(X+2*j,2)}, {v(sm+8,2)}")
    A([f"v_pk_mul_f32 {v(sm+2*u,2)}, {v(X+2*u,2)}, {v(X+2*u,2)}" for u in range(4)])
    for j in range(4, 80):
        A(f"v_pk_fma_f32 {v(sm+2*(j%4),2)}, {v(X+2*j,2)}, {v(X+2*j,2)}, {v(sm+2*(j%4),2)}")
    A([f"v_pk_add_f32 {v(sm,2)}, {v(sm,2)}, {v(sm+2,2)}", f"v_pk_add_f32 {v(sm+4,2)}, {v(sm+4,2)}, {v(sm+6,2)}",
       f"v_pk_add_f32 {v(sm,2)}, {v(sm,2)}, {v(sm+4,2)}", f"v_add_f32 {v(sm)}, {v(sm)}, {v(sm+1)}"])
    A(xlane_sum([sm], [sm+1]))
    vr, vrc, vr2 = sm+10, sm+12, sm+14
    A([f"v_mul_f32 {v(sm)}, {hex(f2u(1.0/640))}, {v(sm)}",
       f"v_add_f32 {v(sm+1)}, {hex(f2u(1e-5))}, {v(sm)}", f"v_rsq_f32 {v(vr)}, {v(sm+1)}",
       f"v_mul_f32 {v(sm+2)}, {v(vr)}, {v(vr)}", f"v_mul_f32 {v(sm+2)}, {v(sm+2)}, {v(sm)}",
       f"v_add_f32 {v(sm+2)}, {hex(f2u(1e-5))}, {v(sm+2)}", f"v_rsq_f32 {v(sm+2)}, {v(sm+2)}",
       f"v_mul_f32 {v(vrc)}, {hex(f2u(CQ))}, {v(vr)}", f"v_mul_f32 {v(vr2)}, {v(vr)}, {v(sm+2)}",
       f"v_mov_b32 {v(vr+1)}, {v(vr)}", f"v_mov_b32 {v(vrc+1)}, {v(vrc)}", f"v_mov_b32 {v(vr2+1)}, {v(vr2)}"])
    T = 32
    for m in range(8):
        A([f"s_cmp_eq_u32 {s(sNt)}, {m}", f"s_cbranch_scc0 {name}_sk{m}"])
        for ks in range(m, 20, 8):
            for which, sc, sr in ((0, vr, sN), (1, vrc, sQ)):
                t = T + 12*which
                for u in range(2):
                    A([f"v_pk_mul_f32 {v(t+2*u,2)}, {v(LO+4*ks+2*u,2)}, {v(sc,2)}", f"v_pk_mul_f32 {v(t+4+2*u,2)}, {v(X+4*ks+2*u,2)}, {v(sc,2)}"])
                for u in range(4): A(f"v_cvt_pk_bf16_f32 {v(t+8+u)}, {v(t+u)}, {v(t+4+u)}")
                A([f"s_movk_i32 {s(sT0)}, {ks*1024}", f"buffer_store_dwordx4 {v(t+8,4)}, v9, {s(sr,4)}, {s(sT0)} offen"])
            A("s_nop 1")
        A.label(f"{name}_sk{m}")
    for j in range(80):
        A(f"v_pk_mul_f32 {v(X+2*j,2)}, {v(X+2*j,2)}, {v(vr2,2)}")
    for j in range(80):
        A(f"v_cvt_pk_bf16_f32 {v(X+j)}, {v(LO+j)}, {v(X+j)}")
    stamp(2)
    A(["s_waitcnt vmcnt(0)", "s_barrier"])
    stamp(3)
    if diag: A("s_waitcnt lgkmcnt(0)")
    gemm80(A, va, ring, acc, lambda ks: v(X+4*ks, 4), 20)
    stamp(4)
    A([f"s_mov_b32 {s(sT0)}, {hex(f2u(-GK*0.044715))}", f"v_mov_b32 v11, {hex(f2u(-GK))}"])
    for j in range(5): tile_off(A, 48+j, j)
    z = list(range(acc, acc+20)); t = list(range(LO, LO+20))
    A(gelu_ops(z, t, sT0, "v11"))
    for j in range(10):
        A(f"v_cvt_pk_bf16_f32 {v(LO+j)}, {v(acc+2*j)}, {v(acc+2*j+1)}")
    for j in range(10):
        A(f"v_cndmask_b32 {v(LO+j)}, 0, {v(LO+j)}, {s(44,2)}")
    for j in range(5):
        A(f"buffer_store_dwordx2 {v(LO+2*j,2)}, v10, {s(sHs,4)}, {s(48+j)} offen")
    if diag:
        stamp(5); A("s_waitcnt vmcnt(0)"); stamp(6); A(diag_store(7, 10, sWv))
    A.label(f"{name}_end")
    A("s_endpgm")
    A.L, n = fix_hazards(A.L, name)
    return A

def gen_kb2(name="kb2_kernel", diag=False):
    A = Asm()
    def stamp(k):
        if diag: A([f"s_memtime {s(60+4*k,2)}", f"s_memrealtime {s(62+4*k,2)}"])
    head80(A, name)
    sHs, sW, sN, sX1, sSt = 12, 16, 20, 24, 28
    A([f"s_load_dwordx2 s[6:7], s[0:1], {KA_W2}", f"s_load_dwordx2 s[10:11], s[0:1], {KA_WS}"])
    stamp(0)
    ids80(A)
    vo, va, ring, acc, X, RS = 1, 6, 16, 144, 64, 164
    w80_dma_setup(A, vo)
    A("v_lshlrev_b32 v9, 4, v0")
    A("s_waitcnt lgkmcnt(0)")
    A(f"s_mul_i32 {s(sT0)}, {s(sNt)}, 160")
    srd(A, sW, 6, sT0, 0, 640*1280, sT0)
    w80_dma(A, sW, vo, 20)
    A(f"s_mul_i32 {s(sT0)}, {s(sRb)}, {20*1024}")
    srd(A, sHs, 10, sT0, WS_HS, 20*1024)
    srd(A, sN, 10, sT0, WS_XN, 20*1024)
    srd(A, sX1, 10, sT0, WS_X1, 20*1024)
    for ks in range(20):
        if ks % 4 == 0: A(f"s_movk_i32 {s(sT1)}, {ks*1024}")
        A(f"buffer_load_dwordx4 {v(X+4*ks,4)}, v9, {s(sHs,4)}, {s(sT1)} offen offset:{(ks%4)*1024}")
    for j in range(5): tile_off(A, 48+j, j)
    for j in range(5):
        A(f"buffer_load_dwordx2 {v(RS+2*j,2)}, v9, {s(sN,4)}, {s(48+j)} offen")
    A([f"s_lshl_b32 {s(sT0)}, {s(sRb)}, 10", f"s_lshl_b32 {s(sT1)}, {s(sNt)}, 3", f"s_add_u32 {s(sT0)}, {s(sT0)}, {s(sT1)}"])
    srd(A, sSt, 10, sT0, WS_ST, 16*64 - 56)
    A(["v_lshlrev_b32 v10, 6, v0"])
    tr80_addr(A, va)
    A(["s_waitcnt vmcnt(0)", "s_barrier"])
    stamp(1)
    if diag: A("s_waitcnt lgkmcnt(0)")
    gemm80(A, va, ring, acc, lambda ks: v(X+4*ks, 4), 20)
    stamp(2)
    T = 64
    for j in range(10):
        A([f"v_lshlrev_b32 {v(T+2*j)}, 16, {v(RS+j)}", f"v_and_b32 {v(T+2*j+1)}, 0xffff0000, {v(RS+j)}"])
    for j in range(20): A(f"v_add_f32 {v(acc+j)}, {v(acc+j)}, {v(T+j)}")
    for j in range(10): A(f"v_cvt_pk_bf16_f32 {v(RS+j)}, {v(acc+2*j)}, {v(acc+2*j+1)}")
    for j in range(5):
        A(f"buffer_store_dwordx2 {v(RS+2*j,2)}, v9, {s(sX1,4)}, {s(48+j)} offen")
    for j in range(10):
        A([f"v_lshlrev_b32 {v(T+2*j)}, 16, {v(RS+j)}", f"v_and_b32 {v(T+2*j+1)}, 0xffff0000, {v(RS+j)}"])
    A([f"v_add_f32 v12, {v(T)}, {v(T+1)}", f"v_mul_f32 v13, {v(T)}, {v(T)}", f"v_fmac_f32 v13, {v(T+1)}, {v(T+1)}"])
    for j in range(2, 20):
        A([f"v_add_f32 v12, v12, {v(T+j)}", f"v_fmac_f32 v13, {v(T+j)}, {v(T+j)}"])
    A(xlane_sum([12, 13], [14, 15]))
    A(f"buffer_store_dwordx2 v[12:13], v10, {s(sSt,4)}, 0 offen")
    if diag:
        stamp(3); A("s_waitcnt vmcnt(0)"); stamp(4); A(diag_store(5, 10, sWv))
    A.label(f"{name}_end")
    A("s_endpgm")
    A.L, n = fix_hazards(A.L, name)
    return A

def gen_kb3(name="kb3_kernel", diag=False):
    A = Asm()
    def stamp(k):
        if diag: A([f"s_memtime {s(60+4*k,2)}", f"s_memrealtime {s(62+4*k,2)}"])
    head80(A, name)
    sX1, sW, sSt, sU = 12, 16, 20, 24
    A([f"s_load_dwordx2 s[6:7], s[0:1], {KA_W3}", f"s_load_dwordx2 s[10:11], s[0:1], {KA_WS}"])
    stamp(0)
    A(["v_lshrrev_b32 v14, 6, v0", "v_and_b32 v0, 63, v0", f"v_readfirstlane_b32 {s(sWv)}, v14",
       f"s_and_b32 {s(sT0)}, s2, 7", f"s_lshl_b32 {s(sT0)}, {s(sT0)}, 1", f"s_bfe_u32 {s(sT1)}, s2, 0x10003",
       f"s_add_u32 {s(sMt)}, {s(sT0)}, {s(sT1)}", f"s_lshr_b32 {s(sNt)}, s2, 4",
       f"s_lshl_b32 {s(sRb)}, {s(sMt)}, 2", f"s_add_u32 {s(sRb)}, {s(sRb)}, {s(sWv)}", f"s_lshl_b32 {s(sRb)}, {s(sRb)}, 1"])
    vo, va, ring, acc, cs, ST, ONE = 1, 4, 16, 64, 112, 136, 168
    for j in range(3):
        A([f"v_add_u32 v14, {64*j}, v0", "v_mul_u32_u24 v15, 5462, v14", "v_lshrrev_b32 v15, 16, v15",
           "v_lshrrev_b32 v13, 1, v15", "v_and_b32 v13, 2, v13", "v_xor_b32 v13, v13, v0",
           "v_mul_u32_u24 v15, 2880, v15", f"v_lshl_add_u32 {v(vo+j)}, v13, 4, v15"])
    A("v_lshlrev_b32 v9, 4, v0")
    A("s_waitcnt lgkmcnt(0)")
    A(f"s_mul_i32 {s(sT0)}, {s(sNt)}, 192")
    srd(A, sW, 6, sT0, 0, 640*3072, sT0)
    A([f"s_mul_i32 {s(sT0)}, {s(sWv)}, 3072", f"s_mul_i32 {s(sT1)}, {s(sWv)}, {16*3072}"])
    for r in range(10):
        A(f"s_add_u32 m0, {s(sT0)}, {r*4*3072}")
        if r: A(f"s_add_u32 {s(sT1)}, {s(sT1)}, {4*16*3072}")
        else: A("s_nop 0")
        for j in range(3):
            A(f"buffer_load_dwordx4 {v(vo+j)}, {s(sW,4)}, {s(sT1)} offen offset:{j*1024} lds")
    A(f"s_mul_i32 {s(sT0)}, {s(sRb)}, {20*1024}")
    srd(A, sX1, 10, sT0, WS_X1, 40*1024)
    A(f"s_lshl_b32 {s(sT0)}, {s(sRb)}, 10")
    srd(A, sSt, 10, sT0, WS_ST, 2048)
    A(["v_and_b32 v14, 15, v0", "v_lshlrev_b32 v10, 6, v14", "v_and_b32 v14, 48, v0", "v_add_u32 v10, v10, v14"])
    for mb in range(2):
        A(f"buffer_load_dwordx4 {v(ST+4*mb,4)}, v10, {s(sSt,4)}, 0 offen offset:{mb*1024}")
    for n in range(40):
        if n % 4 == 0: A(f"s_mov_b32 {s(sT1)}, {n*1024}")
        A(f"buffer_load_dwordx4 {a(4*n,4)}, v9, {s(sX1,4)}, {s(sT1)} offen offset:{(n%4)*1024}")
    A([f"s_mul_i32 {s(sT0)}, {s(sRb)}, {48*1024}", f"s_mul_i32 {s(sT1)}, {s(sNt)}, 3072", f"s_add_u32 {s(sT0)}, {s(sT0)}, {s(sT1)}"])
    srd(A, sU, 10, sT0, WS_U, 48*1024 + 3072)
    A(["v_lshrrev_b32 v14, 2, v0", f"v_mul_u32_u24 {v(va)}, 192, v14", "v_and_b32 v15, 3, v0",
       f"v_lshl_add_u32 {v(va)}, v15, 3, {v(va)}", "v_and_b32 v14, 4, v14", f"v_lshl_add_u32 {v(va)}, v14, 3, {v(va)}",
       f"v_xor_b32 {v(va+1)}, 32, {v(va)}", f"v_add_u32 {v(va+2)}, 61440, {v(va)}", f"v_add_u32 {v(va+3)}, 61440, {v(va+1)}"])
    for r in range(4): A(f"v_mov_b32 {v(ONE+r)}, 0x3f803f80")
    for r in range(24): A(f"v_mov_b32 {v(cs+r)}, 0")
    A("s_waitcnt vmcnt(40)")
    for mb in range(2):
        b = ST + 4*mb
        A([f"v_add_f32 {v(b)}, {v(b)}, {v(b+2)}", f"v_add_f32 {v(b+1)}, {v(b+1)}, {v(b+3)}"])
    A(xlane_sum([ST, ST+1, ST+4, ST+5], [ST+2, ST+3, ST+6, ST+7]))
    for mb in range(2):
        b = ST + 4*mb
        A([f"v_mul_f32 {v(b)}, {hex(f2u(-1.0/640))}, {v(b)}",
           f"v_mul_f32 {v(b+1)}, {hex(f2u(1.0/640))}, {v(b+1)}",
           f"v_fma_f32 {v(b+1)}, -{v(b)}, {v(b)}, {v(b+1)}",
           f"v_max_f32 {v(b+1)}, 0, {v(b+1)}",
           f"v_add_f32 {v(b+1)}, {hex(f2u(1e-5))}, {v(b+1)}", f"v_rsq_f32 {v(b+1)}, {v(b+1)}"])
    A(["s_waitcnt vmcnt(0)", "s_barrier"])
    stamp(1)
    if diag: A("s_waitcnt lgkmcnt(0)")
    steps = [(kp, j) for kp in range(10) for j in range(6)]
    N = len(steps); R = 5; PD = 3
    def rd(n):
        kp, j = steps[n]
        o = []
        for u in range(2):
            F = ring + 8*(n % R) + 4*u
            off = (2*kp+u)*6144 + (j//2)*64
            vv = va + (j % 2)
            if off >= 61440: off -= 61440; vv += 2
            o += [f"ds_read_b64_tr_b16 {v(F,2)}, {v(vv)} offset:{off}", f"ds_read_b64_tr_b16 {v(F+2,2)}, {v(vv)} offset:{off+3072}"]
        return o
    for n in range(PD): A(rd(n))
    for n in range(N):
        kp, j = steps[n]
        rem = min(PD - 1, N - 1 - n)
        nx = rd(n + PD) if n + PD < N else []
        A(f"s_waitcnt lgkmcnt({4*rem})")
        F = ring + 8*(n % R)
        k = 0
        for mb in range(2):
            for u in range(2):
                ks = 2*kp+u
                A(mfma(v(acc + (j*2+mb)*4, 4), v(F+4*u, 4), a((mb*20+ks)*4, 4), "0" if ks == 0 else None))
                if nx and k >= 2: A(nx[2*(k-2):2*(k-2)+2])
                k += 1
        lab = f"{name}_cs{n}"
        A([f"s_cmp_eq_u32 {s(sWv)}, {(kp + j) % 4}", f"s_cbranch_scc0 {lab}"])
        for u in range(2): A(mfma(v(cs + 4*j, 4), v(F+4*u, 4), v(ONE, 4)))
        A.label(lab)
    stamp(2)
    A(["v_and_b32 v14, 48, v0", f"s_mul_i32 {s(sT0)}, {s(sWv)}, 384", f"s_add_u32 {s(sT0)}, {s(sT0)}, 122880",
       f"v_add_u32 v12, {s(sT0)}, v14", "v_add_u32 v13, 122880, v14", "s_nop 7"])
    for j in range(6): A(f"ds_write_b128 v12, {v(cs+4*j,4)} offset:{j*64}")
    A(["s_waitcnt lgkmcnt(0)", "s_barrier"])
    T = 172
    for w in range(4):
        for j in range(6):
            dst = cs + 4*j if w == 0 else T + (w-1)*24 + 4*j
            A(f"ds_read_b128 {v(dst,4)}, v13 offset:{w*384 + j*64}")
    A([f"s_mov_b32 {s(sT0)}, {hex(f2u(-GK*0.044715))}", f"v_mov_b32 v11, {hex(f2u(-GK))}"])
    A("s_waitcnt lgkmcnt(0)")
    for w in range(3):
        for r in range(12): A(f"v_pk_add_f32 {v(cs+2*r,2)}, {v(cs+2*r,2)}, {v(T+w*24+2*r,2)}")
    for j in range(6):
        for mb in range(2):
            for r in range(4):
                x = acc + (j*2+mb)*4 + r
                A(f"v_fma_f32 {v(x)}, {v(cs+4*j+r)}, {v(ST+4*mb)}, {v(x)}")
    for j in range(6):
        for mb in range(2):
            for r in range(4):
                x = acc + (j*2+mb)*4 + r
                A(f"v_mul_f32 {v(x)}, {v(x)}, {v(ST+4*mb+1)}")
    A(gelu_ops(list(range(acc, acc+48)), list(range(T, T+48)), sT0, "v11"))
    A(f"s_mov_b32 {s(sT1)}, {48*1024}")
    for mb in range(2):
        for kk in range(3):
            t = T + (mb*3+kk)*4
            for h in range(2):
                x = acc + ((2*kk+h)*2+mb)*4
                A([f"v_cvt_pk_bf16_f32 {v(t+2*h)}, {v(x)}, {v(x+1)}", f"v_cvt_pk_bf16_f32 {v(t+2*h+1)}, {v(x+2)}, {v(x+3)}"])
            A(f"buffer_store_dwordx4 {v(t,4)}, v9, {s(sU,4)}, {s(sT1) if mb else 0} offen offset:{kk*1024}")
    if diag:
        stamp(3); A("s_waitcnt vmcnt(0)"); stamp(4); A(diag_store(5, 10, sWv))
    A.label(f"{name}_end")
    A("s_endpgm")
    A.L, n = fix_hazards(A.L, name)
    return A
```

```python
from asmlib import *
from layout import *
from kb import srd, f2u, w80_dma_setup, tile_off, sWv, sMt, sNt, sRb, sT0, sT1, sT2, sT3
import math

STG = 36864
def gen_ko(name="ko_kernel", diag=False):
    A = Asm()
    def stamp(k):
        if diag: A([f"s_memtime {s(60+4*k,2)}", f"s_memrealtime {s(62+4*k,2)}"])
    A(".p2align 8"); A(f".type {name},@function"); A.label(name)
    A(["s_cmp_ge_u32 s2, 256", f"s_cbranch_scc1 {name}_end"])
    sO, sW, sP, sU, sW4 = 12, 16, 20, 24, 28
    sSk, sN4, sGrp, sCnt, sOo, sWo, sSl, sDl, sMo, sMw = 36, 37, 38, 39, 44, 45, 46, 47, 53, 54
    A([f"s_load_dwordx2 s[4:5], s[0:1], {KA_X}", f"s_load_dwordx2 s[6:7], s[0:1], {KA_WO}",
       f"s_load_dwordx4 s[56:59], s[0:1], {KA_W4}", f"s_load_dwordx2 s[10:11], s[0:1], {KA_WS}"])
    stamp(0)
    A(["v_lshrrev_b32 v14, 6, v0", "v_and_b32 v0, 63, v0", f"v_readfirstlane_b32 {s(sWv)}, v14",
       f"s_bfe_u32 {s(sSk)}, s2, 0x20001",
       f"s_and_b32 {s(sT0)}, s2, 1", f"s_lshl_b32 {s(sT0)}, {s(sT0)}, 3", f"s_bfe_u32 {s(sT1)}, s2, 0x30003",
       f"s_add_u32 {s(sMt)}, {s(sT0)}, {s(sT1)}",
       f"s_lshr_b32 {s(sN4)}, s2, 6",
       f"s_lshl_b32 {s(sGrp)}, {s(sMt)}, 2", f"s_add_u32 {s(sGrp)}, {s(sGrp)}, {s(sN4)}"])
    vo, vO0, vO1, vB, vA = 1, 6, 7, 8, 9
    ACC, FR = 16, 96
    for j in range(5):
        jj = j if j < 4 else 0
        A([f"v_add_u32 v14, {64*j}, v0", "v_mul_u32_u24 v15, 3277, v14", "v_lshrrev_b32 v15, 16, v15",
           "v_lshrrev_b32 v13, 1, v15", "v_and_b32 v13, 2, v13", "v_xor_b32 v13, v13, v14",
           "v_mul_u32_u24 v15, 960, v15", f"v_lshl_add_u32 {v(vo+j)}, v13, 4, v15"])
        if jj: A(f"v_subrev_u32 {v(vo+j)}, {1024*jj}, {v(vo+j)}")
    A([f"v_lshlrev_b32 {v(vO0)}, 4, v0", f"v_add_u32 {v(vO1)}, {192*1024-2048}, {v(vO0)}"])
    A("s_waitcnt lgkmcnt(0)")
    A([f"s_lshl_b32 {s(sT0)}, {s(sMt)}, 2", f"s_add_u32 {s(sT0)}, {s(sT0)}, {s(sWv)}", f"s_mul_i32 {s(sT0)}, {s(sT0)}, {2*192*1024}",
       f"s_mul_i32 {s(sT1)}, {s(sSk)}, {48*1024}", f"s_add_u32 {s(sT0)}, {s(sT0)}, {s(sT1)}"])
    srd(A, sO, 10, sT0, WS_O, (192+48)*1024)
    A([f"s_mul_i32 {s(sT0)}, {s(sSk)}, {1536*1280}", f"s_mul_i32 {s(sT1)}, {s(sWv)}, {16*1280}", f"s_add_u32 {s(sT0)}, {s(sT0)}, {s(sT1)}",
       f"s_mul_i32 {s(sT1)}, {s(sN4)}, 320", f"s_add_u32 {s(sT0)}, {s(sT0)}, {s(sT1)}"])
    srd(A, sW, 6, sT0, 0, 6144*1280, sT0)
    A([f"s_lshl_b32 {s(sMo)}, {s(sWv)}, 12", f"s_mul_i32 {s(sMw)}, {s(sWv)}, 5120", f"s_add_u32 {s(sMw)}, {s(sMw)}, 16384",
       f"s_mov_b32 {s(sOo)}, 0", f"s_mov_b32 {s(sWo)}, 0", f"s_mov_b32 {s(sSl)}, 0"])
    def dma():
        o = [f"s_add_u32 m0, {s(sSl)}, {s(sMo)}", f"s_add_u32 {s(sT0)}, {s(sSl)}, {s(sMw)}"]
        for e in range(2):
            for ks in range(2):
                o.append(f"buffer_load_dwordx4 {v(vO0+e)}, {s(sO,4)}, {s(sOo)} offen offset:{e*2048+ks*1024} lds")
        o += [f"s_mov_b32 m0, {s(sT0)}", f"s_add_u32 {s(sOo)}, {s(sOo)}, 2048"]
        for j in range(4):
            o.append(f"buffer_load_dwordx4 {v(vo+j)}, {s(sW,4)}, {s(sWo)} offen offset:{j*1024} lds")
        o += [f"s_add_u32 m0, {s(sT0)}, 4096", f"s_add_u32 {s(sSl)}, {s(sSl)}, {STG}"]
        o.append(f"buffer_load_dwordx4 {v(vo+4)}, {s(sW,4)}, {s(sWo)} offen lds")
        o += [f"s_add_u32 {s(sWo)}, {s(sWo)}, {64*1280}", f"s_cmp_eq_u32 {s(sSl)}, {4*STG}", f"s_cselect_b32 {s(sSl)}, 0, {s(sSl)}"]
        return o
    for st in range(4): A(dma())
    A([f"s_lshr_b32 {s(sT0)}, {s(sWv)}, 1", f"s_lshl_b32 {s(sT0)}, {s(sT0)}, 13", f"v_add_u32 {v(vB)}, {s(sT0)}, {v(vO0)}",
       "v_lshrrev_b32 v14, 2, v0", "v_mul_u32_u24 v13, 320, v14", "v_and_b32 v15, 3, v0", "v_lshl_add_u32 v13, v15, 3, v13",
       "v_and_b32 v14, 4, v14", "v_lshl_add_u32 v13, v14, 3, v13", "v_add_u32 v13, 16384, v13",
       f"s_and_b32 {s(sT0)}, {s(sWv)}, 1", f"s_lshl_b32 {s(sT1)}, {s(sT0)}, 5", f"s_xor_b32 {s(sT2)}, {s(sT1)}, 32",
       f"v_xor_b32 {v(vA)}, {s(sT1)}, v13", f"v_xor_b32 {v(vA+1)}, {s(sT2)}, v13",
       f"s_lshl_b32 {s(sT1)}, {s(sT0)}, 7", f"s_mul_i32 {s(sT2)}, {s(sT0)}, 192",
       f"v_add_u32 {v(vA)}, {s(sT1)}, {v(vA)}", f"v_add_u32 {v(vA+1)}, {s(sT2)}, {v(vA+1)}"])
    for r in range(80): A(f"v_mov_b32 {v(ACC+r)}, 0")
    Bf = lambda st, mb, ks: FR + 72*st + (mb*2+ks)*4
    Af = lambda st, j, ks: FR + 72*st + 32 + (j*2+ks)*4
    def reads(st):
        o = []
        def ar(j):
            for ks in range(2):
                for hf in range(2):
                    o.append(f"ds_read_b64_tr_b16 {v(Af(st,j,ks)+2*hf,2)}, {v(vA + j%2)} offset:{(2*ks+hf)*5120 + (j//2)*64}")
        for mb in range(4):
            for ks in range(2):
                o.append(f"ds_read_b128 {v(Bf(st,mb,ks),4)}, {v(vB)} offset:{mb*2048+ks*1024}")
        for j in range(5): ar(j)
        return o
    def adv():
        return [f"s_add_u32 {s(sDl)}, {s(sDl)}, {STG}", f"s_cmp_eq_u32 {s(sDl)}, {4*STG}",
                f"s_cselect_b32 {s(sT2)}, {-3*STG}, {STG}" if False else f"s_cselect_b32 {s(sT2)}, {s(55)}, {s(52)}",
                f"s_cselect_b32 {s(sDl)}, 0, {s(sDl)}",
                f"v_add_u32 {v(vB)}, {s(sT2)}, {v(vB)}", f"v_add_u32 {v(vA)}, {s(sT2)}, {v(vA)}", f"v_add_u32 {v(vA+1)}, {s(sT2)}, {v(vA+1)}"]
    A([f"s_mov_b32 s55, {-3*STG}", f"s_mov_b32 s52, {STG}", f"s_mov_b32 {s(sDl)}, 0", f"s_mov_b32 {s(sCnt)}, 0"])
    A(["s_waitcnt vmcnt(27)", "s_barrier"])
    stamp(1)
    A(reads(0)); A(adv())
    def stage(st):
        mf = []
        for j in range(5):
            for mb in range(4):
                for ks in range(2):
                    mf.append(mfma(v(ACC+(j*4+mb)*4, 4), v(Af(st,j,ks),4), v(Bf(st,mb,ks),4)))
        fill = {}
        rd = reads(1-st)
        for n in range(14): fill[n] = rd[2*n:2*n+2]
        q = [(14, x) for x in dma()]
        t = 14
        for x in dma():
            fill.setdefault(t, []).append(x)
            t += 1
        assert t <= 33
        ad = adv()
        for n in range(4): fill.setdefault(33+n, []).append(ad[n])
        fill.setdefault(37, []).extend(ad[4:6]); fill.setdefault(38, []).append(ad[6])
        return ["s_waitcnt vmcnt(18) lgkmcnt(0)", "s_barrier"] + weave(mf, fill)
    A(".p2align 6")
    A.label(f"{name}_loop")
    A([f"s_cmp_lt_u32 {s(sCnt)}, 10", f"s_cselect_b32 {s(sO+2)}, {s(sO+2)}, 0", f"s_cselect_b32 {s(sW+2)}, {s(sW+2)}, 0"])
    b0, b1 = stage(0), stage(1)
    assert check_linear(b0+b1+b0, "ko") == 0
    A(b0); A(b1)
    A([f"s_add_u32 {s(sCnt)}, {s(sCnt)}, 1", f"s_cmp_lt_u32 {s(sCnt)}, 12", f"s_cbranch_scc1 {name}_loop"])
    stamp(2)
    A([f"s_lshl_b32 {s(sT0)}, {s(sGrp)}, 2", f"s_add_u32 {s(sT0)}, {s(sT0)}, {s(sWv)}", f"s_lshl_b32 {s(sT0)}, {s(sT0)}, 2",
       f"s_add_u32 {s(sT0)}, {s(sT0)}, {s(sSk)}", f"s_mul_i32 {s(sT0)}, {s(sT0)}, 20480"])
    srd(A, sP, 10, sT0, WS_PART, 20480)
    A([f"s_and_b32 {s(sT0)}, {s(sSk)}, 1", f"s_lshl_b32 {s(sNt)}, {s(sN4)}, 1", f"s_add_u32 {s(sNt)}, {s(sNt)}, {s(sT0)}",
       f"s_lshr_b32 {s(sT0)}, {s(sSk)}, 1", f"s_lshl_b32 {s(sT0)}, {s(sT0)}, 2", f"s_lshl_b32 {s(sRb)}, {s(sMt)}, 3",
       f"s_add_u32 {s(sRb)}, {s(sRb)}, {s(sT0)}", f"s_add_u32 {s(sRb)}, {s(sRb)}, {s(sWv)}"])
    A(f"s_mul_i32 {s(sT0)}, {s(sRb)}, {48*1024}")
    srd(A, sU, 10, sT0, WS_U, 48*1024)
    A([f"s_mul_i32 {s(sT0)}, {s(sNt)}, 160", f"s_mul_i32 {s(sT1)}, {s(sWv)}, {32*1280}", f"s_add_u32 {s(sT0)}, {s(sT0)}, {s(sT1)}"])
    srd(A, sW4, 56, sT0, 0, 1536*1280, sT0)
    w80_dma_setup(A, vo)
    for mb in range(4):
        for j in range(5):
            n = mb*5+j
            if n % 4 == 0: A(f"s_movk_i32 {s(sT1)}, {n*1024}")
            A(f"buffer_store_dwordx4 {v(ACC+(j*4+mb)*4,4)}, {v(vO0)}, {s(sP,4)}, {s(sT1)} offen offset:{(n%4)*1024} sc1")
    A(["s_waitcnt vmcnt(20) lgkmcnt(0)", "s_barrier"])
    RS = 20480; NR = 7
    A(f"s_mul_i32 {s(sMw)}, {s(sWv)}, 5120")
    def round_loads(r):
        o = [f"s_add_u32 m0, {s(sMw)}, {(r%NR)*RS}", f"s_mov_b32 {s(sT1)}, {r*128*1280}"]
        for j in range(4): o.append(f"buffer_load_dwordx4 {v(vo+j)}, {s(sW4,4)}, {s(sT1)} offen offset:{j*1024} lds")
        o += [f"s_add_u32 m0, {s(sMw)}, {(r%NR)*RS+4096}", f"s_mov_b32 {s(sT2)}, {r*4096}"]
        o.append(f"buffer_load_dwordx4 {v(vo+4)}, {s(sW4,4)}, {s(sT1)} offen lds")
        for u in range(4): o.append(f"buffer_load_dwordx4 {a((4*r+u)*4,4)}, {v(vO0)}, {s(sU,4)}, {s(sT2)} offen offset:{u*1024}")
        return o
    PD = 4
    for r in range(PD): A(round_loads(r))
    va = 9
    A(["v_lshrrev_b32 v14, 2, v0", f"v_mul_u32_u24 {v(va)}, 160, v14", "v_and_b32 v15, 3, v0",
       f"v_lshl_add_u32 {v(va)}, v15, 3, {v(va)}", f"v_add_u32 {v(va+1)}, 61440, {v(va)}", f"v_add_u32 {v(va+2)}, 122880, {v(va)}"])
    A([f"s_waitcnt vmcnt({9*PD})", "s_barrier"])
    A([f"s_lshl_b32 {s(sT0)}, {s(sGrp)}, 9", f"s_add_u32 {s(sT0)}, {s(sT0)}, {WS_FLAG}",
       f"s_add_u32 s48, s10, {s(sT0)}", "s_addc_u32 s49, s11, 0",
       f"s_lshl_b32 {s(sT1)}, {s(sSk)}, 7", f"v_mov_b32 v12, {s(sT1)}", "v_mov_b32 v13, 1",
       f"s_cmp_eq_u32 {s(sWv)}, 0", f"s_cbranch_scc0 {name}_nf",
       "s_mov_b64 exec, 1", "global_store_dword v12, v13, s[48:49] sc1", "s_mov_b64 exec, -1"])
    A.label(f"{name}_nf")
    stamp(3)
    if diag: A("s_waitcnt lgkmcnt(0)")
    ACC2, RING = 240 - 20, 96
    PT = 16
    RES = 140
    steps = []
    for kp in range(24):
        for j in range(5):
            for u in range(2): steps.append((2*kp+u, j))
    N = len(steps); R = 10; LD = 7
    def rd(n):
        ks, j = steps[n]
        F = RING + 4*(n % R)
        slot = (ks // 4) % NR
        off = (slot % 3)*RS + (ks % 4)*5120 + j*32
        vv = va + slot // 3
        return [f"ds_read_b64_tr_b16 {v(F,2)}, {v(vv)} offset:{off}", f"ds_read_b64_tr_b16 {v(F+2,2)}, {v(vv)} offset:{off+2560}"]
    issued = PD
    POLL = 8
    def sync_round(r):
        nonlocal issued
        o = []
        if r < POLL:
            o += [f"s_waitcnt vmcnt({9*(issued - r - 1)})", "s_barrier"]
        elif r == POLL:
            assert issued == 12
            lab = f"{name}_poll"
            o += ["v_lshlrev_b32 v12, 7, v0", "v_and_b32 v12, 0x180, v12", f"s_mov_b32 {s(sCnt)}, 0", lab + ":",
                  "global_load_dword v13, v12, s[48:49] sc1", f"s_add_u32 {s(sCnt)}, {s(sCnt)}, 1",
                  f"s_cmp_gt_u32 {s(sCnt)}, 0x100000", f"s_cbranch_scc1 {lab}_out", "s_waitcnt vmcnt(0)",
                  "v_cmp_ne_u32 vcc, 1, v13", "s_nop 1", f"s_cbranch_vccnz {lab}", lab + "_out:", "s_waitcnt vmcnt(0)", "s_barrier"]
            o += [f"s_lshl_b32 {s(sT0)}, {s(sGrp)}, 2", f"s_add_u32 {s(sT0)}, {s(sT0)}, {s(sSk)}", f"s_mul_i32 {s(sT0)}, {s(sT0)}, {4*20480}",
                  f"s_add_u32 {s(sT0)}, {s(sT0)}, {s(sMw)}"]
            B = Asm(); srd(B, sP, 10, sT0, WS_PART, 3*20480 + 5120); o += B.L
            for src in range(4):
                for j in range(5):
                    if j % 4 == 0: o.append(f"s_mov_b32 {s(sT1)}, {src*20480 + j*1024}")
                    o.append(f"buffer_load_dwordx4 {v(PT+(src*5+j)*4,4)}, {v(vO0)}, {s(sP,4)}, {s(sT1)} offen offset:{(j%4)*1024} sc1")
            B = Asm()
            B(f"s_mul_i32 {s(sT0)}, {s(sRb)}, {20*1024}"); srd(B, sO, 10, sT0, WS_X1, 20*1024)
            for j in range(5):
                tile_off(B, sT1, j); B(f"buffer_load_dwordx2 {v(RES+2*j,2)}, {v(vO0)}, {s(sO,4)}, {s(sT1)} offen")
            B([f"s_mul_i32 {s(sT0)}, {s(sRb)}, {16*1280}", f"s_mul_i32 {s(sT1)}, {s(sNt)}, 160", f"s_add_u32 {s(sT0)}, {s(sT0)}, {s(sT1)}"])
            srd(B, sW, 4, sT0, 0, 15*1280+160); srd(B, sU, 58, sT0, 0, 15*1280+160)
            B(["v_and_b32 v14, 15, v0", "v_mul_u32_u24 v8, 1280, v14", "v_lshrrev_b32 v15, 4, v0", "v_lshl_add_u32 v8, v15, 3, v8"])
            for j in range(5): B(f"buffer_load_dwordx2 {v(RES+10+2*j,2)}, v8, {s(sW,4)}, 0 offen offset:{j*32}")
            o += B.L
        return o
    A(sync_round(0))
    for n in range(LD): A(rd(n))
    for n in range(N):
        ks, j = steps[n]
        rem = min(LD - 1, N - 1 - n)
        A(f"s_waitcnt lgkmcnt({2*rem})")
        A(mfma(v(ACC2+4*j, 4), v(RING + 4*(n % R), 4), a(4*ks, 4), "0" if ks == 0 else None))
        if n + LD < N:
            if (n + LD) % 20 == 0:
                r = (n + LD) // 20
                A(sync_round(r))
                while issued < 12 and issued - NR <= r - 2 and issued < r + PD + 1:
                    A(round_loads(issued)); issued += 1
            A(rd(n + LD))
    stamp(4)
    A("s_waitcnt vmcnt(0)")
    for src in range(1, 4):
        for r in range(10): A(f"v_pk_add_f32 {v(PT+2*r,2)}, {v(PT+2*r,2)}, {v(PT+20*src+2*r,2)}")
    T = 40
    for j in range(10):
        A([f"v_lshlrev_b32 {v(T+2*j)}, 16, {v(RES+j)}", f"v_and_b32 {v(T+2*j+1)}, 0xffff0000, {v(RES+j)}"])
    for r in range(20): A(f"v_add_f32 {v(ACC2+r)}, {v(ACC2+r)}, {v(T+r)}")
    for r in range(20): A(f"v_mul_f32 {v(T+r)}, {hex(f2u(-math.log2(math.e)))}, {v(ACC2+r)}")
    for r in range(20): A(f"v_exp_f32 {v(T+r)}, {v(T+r)}")
    for r in range(20): A(f"v_add_f32 {v(T+r)}, 1.0, {v(T+r)}")
    for r in range(20): A(f"v_rcp_f32 {v(T+r)}, {v(T+r)}")
    for r in range(20): A(f"v_mul_f32 {v(ACC2+r)}, {v(ACC2+r)}, {v(T+r)}")
    for j in range(10):
        A([f"v_lshlrev_b32 {v(T+2*j)}, 16, {v(RES+10+j)}", f"v_and_b32 {v(T+2*j+1)}, 0xffff0000, {v(RES+10+j)}"])
    for r in range(20): A(f"v_fmac_f32 {v(T+r)}, {v(PT+r)}, {v(ACC2+r)}")
    for j in range(10): A(f"v_cvt_pk_bf16_f32 {v(RES+j)}, {v(T+2*j)}, {v(T+2*j+1)}")
    for j in range(5): A(f"buffer_store_dwordx2 {v(RES+2*j,2)}, v8, {s(sU,4)}, 0 offen offset:{j*32}")
    if diag:
        stamp(5); A("s_waitcnt vmcnt(0)"); stamp(6); A(diag_store(7, 10, sWv))
    A.label(f"{name}_end")
    A("s_endpgm")
    A.L, n = fix_hazards(A.L, name)
    return A
```

```python
S, D, H, DH, F = 2048, 640, 32, 192, 1536
WS_XQ = 0
WS_XN = WS_XQ + 128*20*1024
WS_HS = WS_XN + 128*20*1024
WS_X1 = WS_HS + 128*20*1024
WS_U  = WS_X1 + 128*20*1024
WS_O  = WS_U + 128*48*1024
WS_ST = WS_O + 128*192*1024
WS_PART = WS_ST + 2048*8*2*4
WS_FLAG = WS_PART + 64*4*4*20480
WS_END = WS_FLAG + 65536
KA_X, KA_K, KA_V, KA_WQ, KA_WO, KA_BX, KA_W1, KA_W2, KA_W3, KA_W4, KA_OUT, KA_DBG, KA_WS = [8*i for i in range(13)]
```

```python
import sys
from asmlib import *
from layout import *
import ka, kb, ko

HDR = open("recurrent_scan__mha_block_cached__mixer_s_mlp__prompt.s.ref").read().split("; Override launch")[0]

def build(kernels, path):
    out = HDR
    for k in kernels:
        out += f"; @launch kernel={k[0]} grid=({k[2]},1,1) block=({k[3]},1,1) lds={k[4]}\n"
    out += '.amdgcn_target "amdgcn-amd-amdhsa--gfx950"\n.text\n'
    seen = set()
    for k in kernels:
        if k[0] in seen: continue
        seen.add(k[0])
        out += f".globl {k[0]}\n" + k[1].text()
    out += '.section .rodata,"a"\n'
    seen = set()
    for k in kernels:
        if k[0] in seen: continue
        seen.add(k[0])
        out += kdesc(k[0], k[5], k[6])
    open(path, "w").write(out)

def kernels(diag=None):
    d = lambda n: diag == n
    return [("kb1_kernel", kb.gen_kb1(diag=d("kb1")), 256, 256, 102400, 256, 256),
            ("kb2_kernel", kb.gen_kb2(diag=d("kb2")), 256, 256, 102400, 256, 256),
            ("kb3_kernel", kb.gen_kb3(diag=d("kb3")), 256, 256, 124416, 512, 256),
            ("ka_kernel", ka.gen_ka(diag=d("ka")), 256, 256, 163840, 512, 256),
            ("ko_kernel", ko.gen_ko(diag=d("ko")), 256, 256, 147456, 512, 256)]

if __name__ == "__main__":
    build(kernels(), "recurrent_scan__mha_block_cached__mixer_s_mlp__prompt.s")
    for n in ("kb1", "kb2", "kb3", "ka", "ko"):
        build(kernels(n), f"t_{n}.s")
```

```python
import re

def v(b, n=1):
    return f"v{b}" if n == 1 else f"v[{b}:{b+n-1}]"
def a(b, n=1):
    return f"a{b}" if n == 1 else f"a[{b}:{b+n-1}]"
def s(b, n=1):
    return f"s{b}" if n == 1 else f"s[{b}:{b+n-1}]"

class Asm:
    def __init__(self):
        self.L = []
    def __call__(self, x):
        if isinstance(x, (list, tuple)):
            for y in x: self(y)
        else:
            self.L.append(x)
    def label(self, n):
        self.L.append(n + ":")
    def c(self, t):
        self.L.append("; " + t)
    def text(self):
        out = []
        for l in self.L:
            if l.endswith(":") or l.startswith(".") or l.startswith(";"):
                out.append(l)
            else:
                out.append("  " + l)
        return "\n".join(out) + "\n"

def mfma(d, A, B, C=None):
    return f"v_mfma_f32_16x16x32_bf16 {d}, {A}, {B}, {C if C is not None else d}"

def kdesc(name, vgpr=512, accum=256, sgpr=102):
    return "\n".join([".p2align 6", f".amdhsa_kernel {name}", f"  .amdhsa_next_free_vgpr {vgpr}",
        f"  .amdhsa_next_free_sgpr {sgpr}", f"  .amdhsa_accum_offset {accum}",
        "  .amdhsa_group_segment_fixed_size 0", "  .amdhsa_kernarg_size 104",
        "  .amdhsa_user_sgpr_count 2", "  .amdhsa_user_sgpr_kernarg_segment_ptr 1",
        "  .amdhsa_system_sgpr_workgroup_id_x 1", ".end_amdhsa_kernel"]) + "\n"

_reg = re.compile(r"\b([vas])(\d+)\b|\b([vas])\[(\d+):(\d+)\]")
def regs_of(op):
    out = set()
    for m in _reg.finditer(op):
        if m.group(1):
            out.add((m.group(1), int(m.group(2))))
        else:
            for i in range(int(m.group(4)), int(m.group(5)) + 1):
                out.add((m.group(3), i))
    if re.search(r"\bvcc\b", op): out.add(("vcc", 0))
    if re.search(r"\bm0\b", op): out.add(("m0", 0))
    if re.search(r"\bexec\b", op): out.add(("exec", 0))
    return out

TRANS = ("v_exp_f32", "v_log_f32", "v_rcp_f32", "v_rsq_f32", "v_sqrt_f32", "v_sin_f32", "v_cos_f32")

class I:
    def __init__(self, text):
        self.text = text
        t = text.split(";")[0].strip()
        p = t.split(None, 1)
        self.op = p[0]
        ops = [x.strip() for x in p[1].split(",")] if len(p) > 1 else []
        self.ops = ops
        op = self.op
        self.w = set(); self.r = set()
        self.kind = "other"
        self.states = 1
        if op == "s_nop":
            self.states = int(ops[0], 0) + 1; self.kind = "nop"
        elif op.startswith("v_mfma"):
            self.kind = "mfma"
            self.w = regs_of(ops[0]); self.A = regs_of(ops[1]); self.B = regs_of(ops[2]); self.C = regs_of(ops[3])
            self.r = self.A | self.B | self.C
            self.passes = 4 if "16x16x32" in op else 8
        elif op.startswith("v_cmp"):
            self.kind = "valu"
            self.w = regs_of(ops[0]); self.r = set().union(*[regs_of(x) for x in ops[1:]])
            if op.startswith("v_cmpx"): self.w.add(("exec", 0))
        elif op.startswith("v_permlane") and "swap" in op:
            self.kind = "valu"; self.perm = True
            self.w = regs_of(ops[0]) | regs_of(ops[1]); self.r = set(self.w)
        elif op.startswith("v_"):
            self.kind = "valu"
            self.w = regs_of(ops[0]); self.r = set().union(*[regs_of(x) for x in ops[1:]]) if len(ops) > 1 else set()
            if op.startswith(("v_add_co", "v_sub_co", "v_addc_co", "v_subb_co", "v_div_scale")):
                self.w |= regs_of(ops[1])
            if op.startswith(("v_fmac", "v_mac", "v_dot2c")): self.r |= self.w
            if "dpp" in t or "row_" in t or "quad_perm" in t: self.dpp = True; self.r |= self.w
        elif op.startswith("ds_"):
            self.kind = "ds"
            if op.startswith(("ds_read", "ds_bpermute", "ds_permute", "ds_swizzle")):
                self.w = regs_of(ops[0]); self.r = set().union(*[regs_of(x) for x in ops[1:]])
            else:
                self.r = set().union(*[regs_of(x) for x in ops])
        elif op.startswith(("buffer_", "global_", "flat_")):
            self.kind = "vmem"
            islds = re.search(r"\blds\b", t) is not None or "load_lds" in op
            if "load" in op and not islds:
                self.w = regs_of(ops[0]); self.r = set().union(*[regs_of(x) for x in ops[1:]])
            elif op.startswith(("buffer_wbl2", "buffer_inv")):
                pass
            else:
                self.r = set().union(*[regs_of(x) for x in ops])
                if "atomic" in op and re.search(r"\bsc0\b", t): self.w = regs_of(ops[0])
            if islds: self.r.add(("m0", 0)); self.lds = True
            if "store" in op and ("x4" in op or "x3" in op):
                self.wide_data = regs_of(ops[0]) if op.startswith("buffer") else regs_of(ops[1])
        elif op.startswith("s_"):
            self.kind = "salu"
            if op.startswith(("s_cmp", "s_cbranch", "s_branch", "s_waitcnt", "s_barrier", "s_endpgm", "s_setprio", "s_sleep", "s_bitcmp")):
                self.r = set().union(*[regs_of(x) for x in ops]) if ops else set()
            else:
                self.w = regs_of(ops[0]); self.r = set().union(*[regs_of(x) for x in ops[1:]]) if len(ops) > 1 else set()
                if "saveexec" in op: self.w.add(("exec", 0))

def need(p, c):
    n = 0
    vw = {x for x in p.w if x[0] in "va"}
    if p.kind == "mfma":
        ps = p.passes
        tab_v = {2: 5, 4: 8, 8: 12, 16: 20}[ps]
        tab_c = {2: 4, 4: 6, 8: 10, 16: 18}[ps]
        tab_war = {2: 1, 4: 3, 8: 7, 16: 15}[ps]
        if c.kind == "mfma":
            if (c.A | c.B) & p.w: n = max(n, tab_v)
            if c.C & p.w and c.C != p.w: n = max(n, tab_c)
            if c.w & p.w and not (c.C == p.w):
                n = max(n, tab_c)
        elif c.kind == "valu":
            if (c.r | c.w) & p.w: n = max(n, tab_v)
            if c.w & p.C: n = max(n, tab_war)
        elif c.kind in ("ds", "vmem"):
            if (c.r | c.w) & p.w: n = max(n, tab_v)
    if p.kind == "valu":
        if c.kind == "mfma" and c.r & vw: n = max(n, 2)
        if c.kind == "mfma" and ("exec", 0) in p.w: n = max(n, 4)
        if c.kind == "valu":
            if p.op.startswith(TRANS) and not c.op.startswith(TRANS) and c.r & vw: n = max(n, 1)
            if getattr(c, "perm", False) and c.r & vw: n = max(n, 2)
            if getattr(c, "dpp", False) and c.r & vw: n = max(n, 2)
            if c.op.startswith(("v_readlane", "v_readfirstlane")) and c.r & vw: n = max(n, 1)
            sw = {x for x in p.w if x[0] in ("s", "vcc")}
            if sw & c.r:
                n = max(n, 4 if c.op.startswith(("v_readlane", "v_writelane", "v_div_fmas")) else 2)
            if ("exec", 0) in p.w:
                if c.op.startswith(("v_readlane", "v_readfirstlane", "v_writelane", "v_permlane")): n = max(n, 4)
                if getattr(c, "dpp", False): n = max(n, 5)
        if c.kind == "vmem":
            sw = {x for x in p.w if x[0] == "s"}
            if sw & c.r: n = max(n, 5)
        if c.kind == "salu":
            sw = {x for x in p.w if x[0] in ("s", "vcc")}
            if sw & c.r: n = max(n, 1)
    if p.kind == "salu" and ("m0", 0) in p.w and getattr(c, "lds", False): n = max(n, 1)
    if p.kind == "vmem" and hasattr(p, "wide_data"):
        if c.w & p.wide_data and c.kind != "vmem" and c.kind != "ds": n = max(n, 2)
    return n

def check_linear(lines, name=""):
    ins = []
    for l in lines:
        t = l.strip()
        if not t or t.startswith((";", ".")) or t.endswith(":"): continue
        ins.append(I(t))
    bad = 0
    for j, c in enumerate(ins):
        dist = 0
        for i in range(j - 1, max(-1, j - 24), -1):
            p = ins[i]
            n = need(p, c)
            if n > dist:
                print(f"HAZARD[{name}] need {n} have {dist}: '{p.text}' -> '{c.text}' (idx {i}->{j})")
                bad += 1
            dist += p.states
            if dist >= 21: break
    return bad

def fix_hazards(lines, name="", verbose=False):
    out = []
    hist = []
    nins = 0
    for l in lines:
        t = l.strip()
        if not t or t.startswith((";", ".")) or t.endswith(":"):
            out.append(l); continue
        c = I(t)
        dist = 0; short = 0
        for p in reversed(hist[-24:]):
            n = need(p, c)
            if n - dist > short:
                short = n - dist
                why = p.text
            dist += p.states
            if dist >= 21: break
        if short > 0:
            if verbose: print(f"[{name}] nop {short} before '{t}' (producer '{why}')")
            nop = f"s_nop {short-1}"
            out.append(nop); hist.append(I(nop)); nins += 1
        out.append(l); hist.append(c)
    return out, nins

def cost(x):
    if isinstance(x, tuple): return 2
    op = x.split()[0]
    if op.startswith(TRANS): return 2
    if op.startswith("s_"): return 0
    return 1

def weave(mf, fill):
    out = []
    for t, m in enumerate(mf):
        out.append(m)
        f = fill.get(t, [])
        sc = [x for x in f if isinstance(x, str) and x.startswith("s_")]
        ve = [x for x in f if isinstance(x, str) and not x.startswith("s_")]
        out += sc + ve
        for x in f:
            if isinstance(x, tuple): out += list(x)
    return out

def greedy(mf, queue, fill=None, cap=2):
    fill = fill if fill is not None else {}
    qi = 0
    for t in range(len(mf)):
        used = sum(cost(x) for x in fill.get(t, []))
        while qi < len(queue) and queue[qi][0] <= t and used + cost(queue[qi][1]) <= cap:
            fill.setdefault(t, []).append(queue[qi][1]); used += cost(queue[qi][1]); qi += 1
    return fill, [x[1] for x in queue[qi:]]


def diag_store(n, sws, swv, base=60, off=None):
    from layout import WS_END
    o = []
    o.append("s_waitcnt lgkmcnt(0)")
    o.append(f"s_lshl_b32 s3, s2, 3")
    o.append(f"s_add_u32 s3, s3, {s(swv)}")
    o.append(f"s_lshl_b32 s3, s3, 7")
    o.append(f"s_add_u32 s3, s3, {WS_END if off is None else off}")
    o.append(f"v_mov_b32 v1, s3")
    for k in range(n):
        o.append(f"v_mov_b32 v2, {s(base+4*k)}")
        o.append(f"v_mov_b32 v3, {s(base+4*k+2)}")
        o.append(f"global_store_dwordx2 v1, v[2:3], {s(sws,2)} offset:{8*k}")
    o.append("s_waitcnt vmcnt(0)")
    return o

def is_vmem(t):
    return t.startswith(("buffer_", "global_"))
def resolve_vm(lines):
    out = []; hist = []; waited = set()
    for l in lines:
        t = l.strip()
        if t.startswith("s_WAITVM"):
            p = t.split()
            tags = p[1].split(",")
            last = -1
            for tg in tags:
                idx = [i for i, h in enumerate(hist) if h == tg]
                assert idx, f"tag {tg} never issued"
                last = max(last, idx[-1]); waited.add(tg)
            n = len(hist) - 1 - last
            n = min(n, 63)
            out.append(f"s_waitcnt vmcnt({n})" + (" lgkmcnt(0)" if len(p) > 2 else ""))
        elif t.startswith("VMFAKE"):
            p = t.split(); hist += [p[1]] * int(p[2])
        elif t.startswith("VMRESET"):
            hist = []
        else:
            if is_vmem(t):
                tag = t.split(";#")[1].strip() if ";#" in t else "-"
                if tag != "opt": hist.append(tag)
                assert tag not in waited, f"op with tag {tag} issued after its wait: {t}"
            out.append(l)
    return out
def tag(lst, tg):
    if isinstance(lst, str): lst = [lst]
    return [x + f" ;#{tg}" if is_vmem(x) else x for x in lst]
```

```python
S, D, H, DH, F = 2048, 640, 32, 192, 1536
WS_XQ = 0
WS_XN = WS_XQ + 128*20*1024
WS_HS = WS_XN + 128*20*1024
WS_X1 = WS_HS + 128*20*1024
WS_U  = WS_X1 + 128*20*1024
WS_O  = WS_U + 128*48*1024
WS_ST = WS_O + 128*192*1024
WS_RT = WS_ST + 2048*8*2*4
WS_WOP = WS_RT + 8192
WS_W4P = WS_WOP + 4*192*10*1024
WS_W3P = WS_W4P + 8*48*5*1024
WS_W2P = WS_W3P + 16*20*6*1024
WS_PART = WS_W2P + 8*20*5*1024
WS_FLAG = WS_PART + 8*4*8*8*10240
WS_EPOCH = WS_FLAG + 8*1024
WS_END = WS_FLAG + 65536
KA_X, KA_K, KA_V, KA_WQ, KA_WO, KA_BX, KA_W1, KA_W2, KA_W3, KA_W4, KA_OUT, KA_DBG, KA_WS = [8*i for i in range(13)]
DIAG_SLOT = {"kb1_kernel": 0, "kb2_kernel": 1, "kb3_kernel": 2, "ka_kernel": 3, "ko_kernel": 4}
DIAG_N = {"kb1_kernel": 7, "kb2_kernel": 5, "kb3_kernel": 5, "ka_kernel": 7, "ko_kernel": 7}
```

```python
from asmlib import *
from layout import *
import struct, math

def f2u(x): return struct.unpack("<I", struct.pack("<f", x))[0]
def fx(x): return hex(f2u(x))
CQ = math.log2(math.e) / math.sqrt(DH)
GK = 2*math.sqrt(2/math.pi)*math.log2(math.e)
SLOT = 24576
SPARE = 6*SLOT
sA, sB, sK, sV, sC, sD, sE = 4, 8, 12, 16, 20, 24, 28
sWv, sHead, sQt, sWoff = 32, 33, 34, 35
sRa, sRb, sRc, sKo, sVo, sT0, sT1, sCnt, sT2, sT3 = 36, 37, 38, 39, 40, 41, 42, 43, 44, 45
sXo, sDl, sTag, sX8, sH4, sRbP, sW5, sSwK, sSwV, sMsk = 46, 50, 51, 52, 53, 54, 55, 56, 59, 62
pX, pK, pV, pWq, pWo, pBx, pW1, pW2, pW3, pW4, pOut, pDbg, pWs = [64 + 2*i for i in range(13)]
sFo, sFo4, sF, sDg = 90, 91, 92, 96
vDma, vKa, vVa, vL, vT = 1, 4, 6, 10, 14
Fa, Fb = 16, 40
vQ, vS, vNm = 64, 96, 112
vP = (128, 160)
vFree = 192
aQ = 192
F_XQ, F_HS, F_X1, F_O, F_U, F_PT, F_RP = range(7)

def Qf(ks, qb): return a(aQ + (ks*4+qb)*4, 4) if ks < 4 else v(vQ + ((ks-4)*4+qb)*4, 4)
def Oacc(dt, qb): return a((dt*4+qb)*4, 4)
def Qacc(dt, qb): return 64 + (dt*4+qb)*4
def Pf(buf, ks, qb): return vP[buf] + (qb*2+ks)*4

def q_mfmas(F, Sb, zeroC=False):
    out = []
    for qb in range(4):
        for ks in range(6):
            C = None
            if ks == 0: C = "0" if zeroC else v(vNm + 4*qb, 4)
            out.append(mfma(v(Sb + 4*qb, 4), v(F + 4*ks, 4), Qf(ks, qb), C))
    return out
def p_mfmas(F, i, buf):
    return [mfma(Oacc(3*i+d, qb), v(F + (d*2+ks)*4, 4), v(Pf(buf, ks, qb), 4))
            for d in range(3) for qb in range(4) for ks in range(2)]
def k_reads(F, kb):
    return [f"ds_read_b128 {v(F+4*ks,4)}, {v(vKa + ks%2)} offset:{kb*6144 + (ks//2)*128}" for ks in range(6)]
def v_reads(F, i):
    return [f"ds_read_b64_tr_b16 {v(F+(d*2+ks)*4+hf*2,2)}, {v(vVa + (3*i+d)%4)} offset:{(2*ks+hf)*6144 + ((3*i+d)//4)*128}"
            for d in range(3) for ks in range(2) for hf in range(2)]
def w_reads(F, p):
    out = []
    for d in range(3):
        j = 3*p+d
        for ks in range(2):
            for hf in range(2):
                out.append(f"ds_read_b64_tr_b16 {v(F+(d*2+ks)*4+hf*2,2)}, {v(vVa + (j//2)%2)} offset:{(2*ks+hf)*6144 + (j//4)*128 + 8*(j%2)}")
    return out
def softmax_groups(Sb, qb, blk, buf):
    s0 = Sb + 4*qb
    pd = Pf(buf, blk//2, qb) + 2*(blk % 2)
    l = v(vL + qb)
    e = lambda r: f"v_exp_f32 {v(s0+r)}, {v(s0+r)}"
    ad = lambda r: f"v_add_f32 {l}, {l}, {v(s0+r)}"
    cv = lambda h: f"v_cvt_pk_bf16_f32 {v(pd+h)}, {v(s0+2*h)}, {v(s0+2*h+1)}"
    return [[e(0)], [e(1)], [e(2)], [ad(0), cv(0)], [e(3)], [ad(1), ad(2)], [cv(1), ad(3)]]
PAT = [1,0,1,1,0,1,0,1,0,1,1,0]
def dma3(srd, soff, voff=vDma, sc=" sc1"):
    return [f"buffer_load_dwordx4 {v(voff+j)}, {s(srd,4)}, {s(soff)} offen offset:{j*1024}{sc} lds" for j in range(3)]

def dma_group(i):
    if i == 3:
        return [f"s_add_u32 {s(sT1)}, {s(sRa)}, {s(sWoff)}", f"s_add_u32 m0, {s(sT1)}, {SLOT}"], dma3(sK, sKo)
    if i == 0:
        return [f"s_add_u32 {s(sT2)}, {s(sKo)}, 3072", f"s_add_u32 {s(sT1)}, {s(sRa)}, {s(sWoff)}", f"s_add_u32 m0, {s(sT1)}, {SLOT+3072}"], dma3(sK, sT2)
    if i == 1:
        return [f"s_add_u32 m0, {s(sRb)}, {s(sWoff)}"], dma3(sV, sVo)
    return [f"s_add_u32 {s(sT2)}, {s(sVo)}, 3072", f"s_add_u32 {s(sT1)}, {s(sRb)}, {s(sWoff)}", f"s_add_u32 m0, {s(sT1)}, 3072"], dma3(sV, sT2)

def body(par):
    mf = []
    for i in range(4):
        mf += q_mfmas(Fa, vS) + p_mfmas(Fb, i, par)
    fill = {}; busy = set()
    for i in range(-1, 4):
        blk = i % 4
        buf = par if i == -1 else 1 - par
        for qb in range(4):
            g = softmax_groups(vS, qb, blk, buf)
            k = 0
            for u in range(12):
                if PAT[u]:
                    t = 48*i + 10 + 12*qb + u
                    if 0 <= t < 192:
                        fill.setdefault(t, []).extend(g[k]); busy.add(t)
                    k += 1
    def free_gaps(lo, hi): return [t for t in range(lo, hi) if t not in busy]
    def put(t, xs):
        fill.setdefault(t, []).extend(xs)
        if any(not x.startswith("s_") for x in xs): busy.add(t)
    for i in range(4):
        b = 48*i
        fg = free_gaps(b, b+21)
        vr = v_reads(Fb, i)
        for n in range(6): put(fg[n], vr[2*n:2*n+2])
        if i == 3:
            put(fg[6], [f"s_sub_u32 {s(sDl)}, {s(sRc)}, {s(sRb)}",
                        f"v_add_u32 {v(vKa)}, {s(sDl)}, {v(vKa)}", f"v_add_u32 {v(vKa+1)}, {s(sDl)}, {v(vKa+1)}"])
            assert fg[6] > b + 9
            put(b+1, [f"s_cmp_eq_u32 {s(sKo)}, {31*SLOT}"])
            for n in range(3): put(b+2+n, [f"s_cselect_b32 {s(sK+n)}, {s(sSwK+n)}, {s(sK+n)}"])
            put(b+5, [f"s_cmp_eq_u32 {s(sVo)}, {31*SLOT}"])
            for n in range(3): put(b+6+n, [f"s_cselect_b32 {s(sV+n)}, {s(sSwV+n)}, {s(sV+n)}"])
            put(b+23, ["s_waitcnt vmcnt(12) lgkmcnt(0)", "s_barrier"])
        else:
            put(b+23, ["s_waitcnt lgkmcnt(0)"])
        fg = free_gaps(b+24, b+45)
        kr = k_reads(Fa, (i+1) % 4)
        for n in range(3): put(fg[n], kr[2*n:2*n+2])
        if i == 3:
            put(b+24, [f"s_mov_b32 {s(sT0)}, {s(sRa)}"]); put(b+25, [f"s_mov_b32 {s(sRa)}, {s(sRb)}"])
            put(b+26, [f"s_mov_b32 {s(sRb)}, {s(sRc)}"]); put(b+27, [f"s_mov_b32 {s(sRc)}, {s(sT0)}"])
            put(b+28, [f"s_add_u32 {s(sKo)}, {s(sKo)}, {SLOT}"]); put(b+29, [f"s_add_u32 {s(sVo)}, {s(sVo)}, {SLOT}"])
        sc, d = dma_group(i)
        g0 = fg[3]
        assert g0 - len(sc) >= b + 30 or i != 3, (g0, b)
        for n, x in enumerate(sc): put(g0 - len(sc) + n, [x])
        for n in range(3): put(fg[3+n], [d[n]])
        if i == 3:
            put(fg[6]-1, [f"s_sub_u32 {s(sDl)}, {s(sRc)}, {s(sRb)}"])
            put(fg[6], [f"v_add_u32 {v(vVa+m)}, {s(sDl)}, {v(vVa+m)}" for m in range(2)])
            put(fg[7], [f"v_add_u32 {v(vVa+m)}, {s(sDl)}, {v(vVa+m)}" for m in range(2, 4)])
        put(b+47, ["s_waitcnt lgkmcnt(0)"])
    for t in range(192):
        assert sum(cost(x) for x in fill.get(t, [])) <= 2, (t, fill[t])
    return mf, fill

def softmax_tail(buf):
    g = softmax_groups(vS, 3, 3, buf)
    k = 0; out = []
    for u in range(12):
        if PAT[u]:
            if -48 + 10 + 36 + u >= 0: out.append(g[k])
            k += 1
    return out

def srd(d, base, off_sgpr=None, off_imm=0, size=0, size_sub=None):
    o = []
    if off_sgpr is not None:
        o += [f"s_add_u32 {s(d)}, {s(base)}, {s(off_sgpr)}", f"s_addc_u32 {s(d+1)}, {s(base+1)}, 0"]
        if off_imm: o += [f"s_add_u32 {s(d)}, {s(d)}, {off_imm}", f"s_addc_u32 {s(d+1)}, {s(d+1)}, 0"]
    elif off_imm:
        o += [f"s_add_u32 {s(d)}, {s(base)}, {off_imm}", f"s_addc_u32 {s(d+1)}, {s(base+1)}, 0"]
    else:
        o += [f"s_mov_b32 {s(d)}, {s(base)}", f"s_mov_b32 {s(d+1)}, {s(base+1)}"]
    if size_sub is not None: o.append(f"s_sub_u32 {s(d+2)}, {size}, {s(size_sub)}")
    else: o.append(f"s_mov_b32 {s(d+2)}, {size}")
    o.append(f"s_mov_b32 {s(d+3)}, 0x20000")
    return o

def xlane(regs, tmps, op="v_add_f32"):
    o = []
    for sw in ("v_permlane32_swap_b32", "v_permlane16_swap_b32"):
        for r, t in zip(regs, tmps): o.append(f"v_mov_b32 {v(t)}, {v(r)}")
        for r, t in zip(regs, tmps): o.append(f"{sw} {v(r)}, {v(t)}")
        for r, t in zip(regs, tmps): o.append(f"{op} {v(r)}, {v(r)}, {v(t)}")
    return o

def gelu_ops(z, t, sAc, vB):
    o = []
    for zi, ti in zip(z, t): o.append(f"v_mul_f32 {v(ti)}, {v(zi)}, {v(zi)}")
    for zi, ti in zip(z, t): o.append(f"v_fma_f32 {v(ti)}, {v(ti)}, {s(sAc)}, {v(vB)}")
    for zi, ti in zip(z, t): o.append(f"v_mul_f32 {v(ti)}, {v(ti)}, {v(zi)}")
    for zi, ti in zip(z, t): o.append(f"v_exp_f32 {v(ti)}, {v(ti)}")
    for zi, ti in zip(z, t): o.append(f"v_add_f32 {v(ti)}, 1.0, {v(ti)}")
    for zi, ti in zip(z, t): o.append(f"v_rcp_f32 {v(ti)}, {v(ti)}")
    for zi, ti in zip(z, t): o.append(f"v_mul_f32 {v(zi)}, {v(zi)}, {v(ti)}")
    return o

def tile_off(dst, sNt, j, add=None):
    o = [f"s_mul_i32 {s(dst)}, {s(sNt)}, 5", f"s_add_u32 {s(dst)}, {s(dst)}, {j}",
         f"s_and_b32 {s(sT3)}, {s(dst)}, 1", f"s_lshl_b32 {s(sT3)}, {s(sT3)}, 3",
         f"s_lshr_b32 {s(dst)}, {s(dst)}, 1", f"s_lshl_b32 {s(dst)}, {s(dst)}, 10", f"s_add_u32 {s(dst)}, {s(dst)}, {s(sT3)}"]
    if add is not None: o.append(f"s_add_u32 {s(dst)}, {s(dst)}, {s(add)}")
    return o

class Mega:
    def __init__(self, name, diag=False, opts=None):
        self.name = name; self.diag = diag; self.A = Asm(); self.ool = []; self.nlab = 0; self.nst = 0
        self.o = dict(opts or {})
        self.stnames = []
    def lab(self, p):
        self.nlab += 1; return f"L{p}{self.nlab}"
    def stamp(self, nm):
        if not self.diag: return []
        k = self.nst; self.nst += 1; self.stnames.append(nm)
        return [f"s_memtime s[100:101]", f"s_memrealtime s[74:75]", "s_waitcnt lgkmcnt(0)",
                "v_mov_b32 v14, s100", "v_mov_b32 v15, s74",
                f"buffer_store_dwordx2 v[14:15], off, {s(sDg,4)}, 0 offset:{8*k} ;#opt", "s_nop 1"]
    def set_flag(self, kind):
        L = self.lab("f")
        so = sFo if kind < 4 else sFo4
        return (f"s_cmp_lg_u32 {s(sWv)}, 0", f"s_cbranch_scc1 {L}", f"v_mov_b32 v14, {s(sTag)}", "s_mov_b64 exec, 1",
                f"buffer_store_dword v14, off, {s(sF,4)}, {s(so)} offset:{(kind%4)*1024} sc1 ;#opt", "s_mov_b64 exec, -1", L + ":")
    def poll_issue(self, vd, vo, tg):
        return f"buffer_load_dword {v(vd)}, {v(vo)}, {s(sF,4)}, 0 offen sc1 ;#{tg}"
    def poll_check(self, vd, vo, tg=None):
        L = self.lab("p")
        self.ool += [L + "_spin:", f"s_mov_b32 {s(sT3)}, 0", L + "_again:", "s_sleep 2",
                     f"buffer_load_dword {v(vd)}, {v(vo)}, {s(sF,4)}, 0 offen sc1 ;#opt",
                     f"s_add_u32 {s(sT3)}, {s(sT3)}, 1", f"s_cmp_gt_u32 {s(sT3)}, 0x40000", "s_waitcnt vmcnt(0)",
                     f"s_cbranch_scc1 {L}_ok", f"v_cmp_ne_u32 vcc, {s(sTag)}, {v(vd)}", "s_nop 1",
                     f"s_cbranch_vccnz {L}_again", f"s_branch {L}_ok"]
        pre = (f"s_WAITVM {tg}",) if tg else ()
        return pre + (f"v_cmp_ne_u32 vcc, {s(sTag)}, {v(vd)}", "s_nop 1", f"s_cbranch_vccnz {L}_spin", L + "_ok:")
    def lin_item(self, slot, srd_, soff_expr, tg):
        o = [f"s_add_u32 m0, {s(sW5)}, {slot*SLOT}"] + soff_expr
        o += [f"buffer_load_dwordx4 v9, {s(srd_,4)}, {s(sT2)} offen offset:{j*1024} sc1 lds" for j in range(4)]
        o += [f"s_add_u32 m0, {s(sW5)}, {slot*SLOT+4096}", f"s_add_u32 {s(sT2)}, {s(sT2)}, 4096"]
        o += [f"buffer_load_dwordx4 v9, {s(srd_,4)}, {s(sT2)} offen sc1 lds"]
        return tag(o, tg)
    def item(self, n):
        slot = n % 6
        tg = f"it{n}"
        if n < 5:
            o = [f"s_add_u32 m0, {s(sW5)}, {slot*SLOT}", f"s_mov_b32 {s(sT2)}, {n*128*1280}"]
            o += [f"buffer_load_dwordx4 {v(4+j)}, {s(sA,4)}, {s(sT2)} offen offset:{j*1024} lds" for j in range(4)]
            o += [f"s_add_u32 m0, {s(sW5)}, {slot*SLOT+4096}", "s_nop 0", f"buffer_load_dwordx4 v8, {s(sA,4)}, {s(sT2)} offen lds"]
            return tag(o, tg)
        if n < 15:
            srd_, base, hi, vo, sc = sC, (n-5)*64*12288, 8*12288, vL, ""
        elif n < 20:
            return self.lin_item(slot, sA, [f"s_mov_b32 {s(sT2)}, {(n-15)*20480}"], tg)
        else:
            srd_, idx = {20: (sK, 0), 21: (sK, 1), 22: (sV, 0), 23: (sK, 2), 24: (sV, 1)}[n]
            base, hi, vo, sc = idx*SLOT, 3072, vDma, " sc1"
        o = []
        for h in range(2):
            o += [f"s_add_u32 m0, {s(sWoff)}, {slot*SLOT + 3072*h}", f"s_mov_b32 {s(sT2+h)}, {base + hi*h}"]
            o += dma3(srd_, sT2+h, vo, sc)
        return tag(o, tg)
    def x_loads(self, t):
        o = []
        for qb in range(4):
            o.append(f"s_mov_b32 {s(sXo+qb)}, {(qb*20+2*t)*1024}")
            for ks in range(2):
                o.append(f"buffer_load_dwordx4 {a((t%8)*32 + (ks*4+qb)*4, 4)}, v9, {s(sD,4)}, {s(sXo+qb)} offen offset:{ks*1024} sc1")
        return tag(o, f"xq{t}")

    def s0(self):
        A, name = self.A, self.name
        A(["s_cmp_ge_u32 s2, 256", f"s_cbranch_scc1 {name}_end",
           "s_load_dwordx16 s[64:79], s[0:1], 0", "s_load_dwordx8 s[80:87], s[0:1], 64", "s_load_dwordx2 s[88:89], s[0:1], 96",
           "v_lshrrev_b32 v14, 6, v0", "v_and_b32 v0, 63, v0", f"v_readfirstlane_b32 {s(sWv)}, v14",
           f"s_and_b32 {s(sX8)}, s2, 7", f"s_bfe_u32 {s(sH4)}, s2, 0x20003", f"s_lshr_b32 {s(sQt)}, s2, 5",
           f"s_lshl_b32 {s(sHead)}, {s(sX8)}, 2", f"s_add_u32 {s(sHead)}, {s(sHead)}, {s(sH4)}"])
        A(["v_and_b32 v36, 7, v0", "v_lshrrev_b32 v37, 3, v0", "v_mul_u32_u24 v38, 1280, v36",
           "v_lshrrev_b32 v14, 2, v37", "v_lshl_add_u32 v39, v14, 6, v38", "v_and_b32 v15, 3, v37", "v_lshl_add_u32 v39, v15, 3, v39",
           "v_lshrrev_b32 v40, 1, v37", "v_and_b32 v41, 1, v37",
           "v_lshl_add_u32 v38, v40, 3, v38", "v_lshl_add_u32 v38, v41, 5, v38",
           f"s_lshl_b32 {s(sT0)}, {s(sQt)}, 5", f"s_add_u32 {s(sT0)}, {s(sT0)}, {s(sHead)}",
           f"s_mul_i32 {s(sT1)}, {s(sT0)}, {8*1280}", f"s_mul_i32 {s(sT2)}, {s(sWv)}, 320", f"s_add_u32 {s(sT1)}, {s(sT1)}, {s(sT2)}",
           f"s_lshl_b32 {s(sFo)}, {s(sT0)}, 2", f"s_add_u32 {s(sFo4)}, {s(sFo)}, 4096",
           "s_waitcnt lgkmcnt(0)"])
        A(srd(sA, pX, sT1, 0, 2048*1280, sT1))
        for i in range(2):
            for h in range(2):
                A(f"buffer_load_dwordx2 {v(16+4*i+2*h,2)}, v39, {s(sA,4)}, 0 offen offset:{128*i+32*h} ;#x")
        A(f"buffer_load_dwordx2 v[24:25], v38, {s(sA,4)}, 0 offen offset:256 ;#x")
        A(srd(sF, pWs, None, WS_FLAG, 16384))
        A(f"s_movk_i32 {s(sT2)}, {WS_EPOCH - WS_FLAG}")
        A(f"buffer_load_dword v42, off, {s(sF,4)}, {s(sT2)} sc1 ;#ep")
        if self.diag:
            A([f"s_lshl_b32 {s(sT2)}, s2, 3", f"s_add_u32 {s(sT2)}, {s(sT2)}, {s(sWv)}", f"s_lshl_b32 {s(sT2)}, {s(sT2)}, 8"])
            A(srd(sDg, pWs, sT2, WS_END, 256))
            A(self.stamp("start"))
        A([f"s_mul_i32 {s(sWoff)}, {s(sWv)}, 6144", f"s_mul_i32 {s(sW5)}, {s(sWv)}, 5120"])
        A([f"s_lshr_b32 {s(sDl)}, s2, 3", f"s_lshl_b32 {s(sDl)}, {s(sDl)}, 2", f"s_add_u32 {s(sDl)}, {s(sDl)}, {s(sWv)}"])
        A([f"s_mul_i32 {s(sT0)}, {s(sX8)}, 160"])
        A(srd(sB, pW1, sT0, 0, 640*1280, sT0))
        A(["v_min_u32 v14, 9, v0", "v_lshrrev_b32 v15, 1, v14", "v_mul_u32_u24 v15, 1280, v15", "v_and_b32 v14, 1, v14",
           "v_mul_u32_u24 v14, 156, v14", "v_add_u32 v14, v14, v15", f"s_mul_i32 {s(sT2)}, {s(sDl)}, {5*1280}",
           f"buffer_load_dword v43, v14, {s(sB,4)}, {s(sT2)} offen ;#tch"])
        A([f"s_mul_i32 {s(sT0)}, {s(sHead)}, 384"])
        A(srd(sC, pWq, sT0, 0, 640*12288, sT0))
        A(["v_min_u32 v14, 59, v0", "v_mul_u32_u24 v15, 43, v14", "v_lshrrev_b32 v15, 7, v15",
           "v_mul_u32_u24 v44, 11904, v15", "v_lshl_add_u32 v14, v14, 7, v44",
           f"s_lshl_b32 {s(sT2)}, {s(sQt)}, 2", f"s_add_u32 {s(sT2)}, {s(sT2)}, {s(sWv)}", f"s_mul_i32 {s(sT2)}, {s(sT2)}, {20*12288}",
           f"buffer_load_dword v43, v14, {s(sC,4)}, {s(sT2)} offen ;#tch"])
        A([f"s_getpc_b64 s[62:63]", f"{name}_pc:", "v_and_b32 v14, 7, v0", f"s_lshl_b32 {s(sT2)}, {s(sDl)}, 3", f"v_add_u32 v14, {s(sT2)}, v14",
           f"v_min_u32 v14, ({name}_hot_end-{name}_pc)/128, v14", "v_lshlrev_b32 v14, 7, v14",
           "global_load_dword v43, v14, s[62:63] ;#tch"])
        for j in range(3):
            A([f"v_add_u32 v14, {64*j}, v0", "v_mul_u32_u24 v14, 2731, v14", "v_lshrrev_b32 v14, 16, v14",
               "v_and_b32 v15, 6, v14", "v_xor_b32 v15, v15, v0", f"v_lshlrev_b32 {v(vDma+j)}, 4, v15",
               "v_mul_u32_u24 v14, 11904, v14", f"v_add_u32 {v(vL+j)}, v14, {v(vDma+j)}"])
        A("v_lshlrev_b32 v9, 4, v0")
        for j in range(5):
            A([f"v_add_u32 v14, {64*j}, v0", "v_mul_u32_u24 v15, 6554, v14", "v_lshrrev_b32 v15, 16, v15",
               "v_mul_u32_u24 v15, 1120, v15", f"v_lshl_add_u32 {v(4+j)}, v14, 4, v15"])
            if 0 < j < 4: A(f"v_subrev_u32 {v(4+j)}, {1024*j}, {v(4+j)}")
        A(["v_lshrrev_b32 v14, 2, v37", "v_lshlrev_b32 v39, 10, v14", "v_and_b32 v15, 3, v37", "v_lshl_add_u32 v39, v15, 8, v39",
           "v_lshl_add_u32 v39, v36, 4, v39",
           "v_lshlrev_b32 v38, 8, v40", "v_lshl_add_u32 v38, v41, 3, v38", "v_lshl_add_u32 v38, v36, 4, v38", "v_add_u32 v38, 4096, v38",
           f"s_lshl_b32 {s(sT2)}, {s(sWv)}, 2", "v_lshlrev_b32 v40, 4, v36", "v_add_u32 v40, 20480, v40", f"v_add_u32 v41, {s(sT2)}, v40",
           "v_lshlrev_b32 v37, 2, v36"])
        A(srd(sE, pWs, None, 0, WS_END))
        A([f"s_mul_i32 {s(sT0)}, {s(sHead)}, 786432", f"s_add_u32 {s(sT0)}, {s(sT0)}, {s(sWoff)}"])
        A(srd(sK, pK, sT0, 0, 786432, sWoff)); A(srd(sV, pV, sT0, 0, 786432, sWoff))
        A([f"s_mul_i32 {s(sT0)}, {s(sWv)}, {16*12288}", f"s_add_u32 {s(sC)}, {s(sC)}, {s(sT0)}", f"s_addc_u32 {s(sC+1)}, {s(sC+1)}, 0",
           f"s_sub_u32 {s(sC+2)}, {s(sC+2)}, {s(sT0)}"])
        A([f"s_lshl_b32 {s(sT0)}, {s(sQt)}, 2", f"s_add_u32 {s(sT0)}, {s(sT0)}, {s(sWv)}", f"s_lshl_b32 {s(sT0)}, {s(sT0)}, 2",
           f"s_add_u32 {s(sRbP)}, {s(sT0)}, {s(sH4)}", f"s_mul_i32 {s(sT0)}, {s(sT0)}, 20480"])
        A(srd(sD, pWs, sT0, WS_XQ, 4*20480))
        A([f"s_lshl_b32 {s(sT0)}, {s(sQt)}, 4", f"s_lshr_b32 {s(sT1)}, {s(sHead)}, 1", f"s_add_u32 {s(sT0)}, {s(sT0)}, {s(sT1)}",
           f"s_mul_i32 {s(sT0)}, {s(sT0)}, 20480", f"s_add_u32 {s(sT0)}, {s(sT0)}, {s(sW5)}",
           f"s_and_b32 {s(sT1)}, {s(sHead)}, 1", f"s_lshl_b32 {s(sT1)}, {s(sT1)}, 7", f"s_add_u32 {s(sT0)}, {s(sT0)}, {s(sT1)}",
           f"s_add_u32 {s(sT1)}, {s(sT0)}, {WS_XN}", f"s_lshl_b32 {s(sT2)}, {s(sFo)}, 3", f"s_add_u32 {s(sT2)}, {s(sT2)}, {WS_RT}"])
        if WS_XQ: A(f"s_add_u32 {s(sT0)}, {s(sT0)}, {WS_XQ}")
        A("s_WAITVM x")
        A(self.stamp("x arrived"))
        for j in range(10):
            A([f"v_lshlrev_b32 {v(26+j)}, 16, {v(16+j)}", f"v_and_b32 {v(16+j)}, 0xffff0000, {v(16+j)}"])
        def reduce(first, off):
            A(first)
            A(["v_pk_add_f32 v[44:45], v[44:45], v[46:47]", "v_add_f32 v44, v44, v45",
               "v_add_f32_dpp v44, v44, v44 row_ror:8 row_mask:0xf bank_mask:0xf"])
            A(xlane([44], [45]))
            A([f"ds_write_b32 v41, v44 offset:{off}", "s_waitcnt lgkmcnt(0)", "s_barrier", f"ds_read_b128 v[44:47], v40 offset:{off}",
               "s_waitcnt lgkmcnt(0)", "v_pk_add_f32 v[44:45], v[44:45], v[46:47]", "v_add_f32 v44, v44, v45"])
        f1 = ["v_pk_add_f32 v[44:45], v[16:17], v[18:19]", "v_pk_add_f32 v[46:47], v[20:21], v[22:23]"]
        f1 += [f"v_pk_add_f32 {v(44+2*(j%2),2)}, {v(44+2*(j%2),2)}, {v(16+2*j,2)}" for j in range(4, 10)]
        reduce(f1, 0)
        A([f"v_mul_f32 v48, {fx(-1.0/640)}, v44"])
        for j in range(10): A(f"v_pk_add_f32 {v(16+2*j,2)}, {v(16+2*j,2)}, v[48:49] op_sel_hi:[1,0]")
        f2 = ["v_pk_mul_f32 v[44:45], v[16:17], v[16:17]", "v_pk_mul_f32 v[46:47], v[18:19], v[18:19]"]
        f2 += [f"v_pk_fma_f32 {v(44+2*(j%2),2)}, {v(16+2*j,2)}, {v(16+2*j,2)}, {v(44+2*(j%2),2)}" for j in range(2, 10)]
        reduce(f2, 128)
        A([f"v_mul_f32 v44, {fx(1.0/640)}, v44", f"v_add_f32 v45, {fx(1e-5)}, v44", "v_rsq_f32 v64, v45",
           "v_mul_f32 v46, v64, v64", "v_mul_f32 v46, v46, v44", f"v_add_f32 v46, {fx(1e-5)}, v46", "v_rsq_f32 v46, v46",
           f"v_mul_f32 v66, {fx(CQ)}, v64", f"v_mul_f32 v68, {fx(1.0/CQ)}, v46"])
        for sc, dst, so in ((66, 44, sT0), (64, 54, sT1)):
            for j in range(10): A(f"v_pk_mul_f32 {v(70+2*j,2)}, {v(16+2*j,2)}, {v(sc,2)} op_sel_hi:[1,0]")
            for j in range(10): A(f"v_cvt_pk_bf16_f32 {v(dst+j)}, {v(80+j)}, {v(70+j)}")
            A([f"buffer_store_dwordx4 {v(dst,4)}, v39, {s(sE,4)}, {s(so)} offen sc1 ;#ln",
               f"buffer_store_dwordx4 {v(dst+4,4)}, v39, {s(sE,4)}, {s(so)} offen offset:2048 sc1 ;#ln",
               f"buffer_store_dwordx2 {v(dst+8,2)}, v38, {s(sE,4)}, {s(so)} offen sc1 ;#ln"])
        A(f"buffer_store_dword v68, v37, {s(sE,4)}, {s(sT2)} offen sc1 ;#ln")
        A(["s_WAITVM ep", f"v_readfirstlane_b32 {s(sTag)}, v42", f"s_mul_i32 {s(sTag)}, {s(sTag)}, 1664525",
           f"s_add_u32 {s(sTag)}, {s(sTag)}, 1013904223"])
        A(self.stamp("ln done"))
        A([f"s_mul_i32 {s(sT0)}, {s(sWv)}, {32*1280}", f"s_add_u32 {s(sA)}, {s(sB)}, {s(sT0)}", f"s_addc_u32 {s(sA+1)}, {s(sB+1)}, 0",
           f"s_sub_u32 {s(sA+2)}, {s(sB+2)}, {s(sT0)}"])
        for n in range(6): A(self.item(n))
        DST = [36, 37, 38, 39, 40, 43, 46, 47, 48, 49, 56, 57, 58, 59, 60, 61]
        self.DST = DST
        sU, sG, sMg, sKS, sDs, sSt = sT0, sT1, sT2, sT3, 62, 63
        A(["v_lshrrev_b32 v36, 3, v0", "v_and_b32 v37, 7, v0", "v_lshlrev_b32 v38, 4, v37"])
        A([f"s_lshl_b32 {s(sDl)}, s2, 2", f"s_add_u32 {s(sDl)}, {s(sDl)}, {s(sWv)}"])
        P = {"wo": (pWo, 0, 10, 6554, 192, WS_WOP), "w4": (pW4, 1920, 5, 13108, 48, WS_W4P),
             "w3": (pW3, 2400, 6, 10923, 20, WS_W3P), "w2": (pW2, 2880, 5, 13108, 20, WS_W2P)}
        def setp(k, cond):
            ptr, u0, G, mg, KS, dst = P[k]
            if not cond:
                return [f"s_mov_b32 {s(sB)}, {s(ptr)}", f"s_mov_b32 {s(sB+1)}, {s(ptr+1)}", f"s_mov_b32 s3, {u0}", f"s_mov_b32 {s(sG)}, {G}",
                        f"s_mov_b32 {s(sMg)}, {mg}", f"s_mov_b32 {s(sKS)}, {KS}", f"s_mov_b32 {s(sDs)}, {dst}"]
            return [f"s_cmp_ge_u32 {s(sU)}, {u0}",
                    f"s_cselect_b32 {s(sB)}, {s(ptr)}, {s(sB)}", f"s_cselect_b32 {s(sB+1)}, {s(ptr+1)}, {s(sB+1)}", f"s_cselect_b32 s3, {u0}, s3",
                    f"s_cselect_b32 {s(sG)}, {G}, {s(sG)}", f"s_cselect_b32 {s(sMg)}, {mg}, {s(sMg)}", f"s_cselect_b32 {s(sKS)}, {KS}, {s(sKS)}",
                    f"s_cselect_b32 {s(sDs)}, {dst}, {s(sDs)}"]
        def unit(r, tg):
            o = []
            if r < 3: o += [f"s_add_u32 {s(sU)}, {s(sDl)}, {1024*r}"]
            else: o += [f"s_lshr_b32 {s(sU)}, {s(sDl)}, 7", f"s_add_u32 {s(sU)}, {s(sU)}, 3072"]
            ks_ = {0: ["wo"], 1: ["wo", "w4"], 2: ["w4", "w3", "w2"], 3: ["w2"]}[r]
            for i, k in enumerate(ks_): o += setp(k, i > 0)
            o += [f"s_sub_u32 {s(sU)}, {s(sU)}, s3"]
            d0, d1, d2, d3 = DST[4*r:4*r+4]
            o += [f"s_cmp_eq_u32 {s(sG)}, 6", f"s_cselect_b32 s3, 2731, 6554" if False else f"s_mov_b32 s3, 6554",
                  f"s_cselect_b32 s3, 2731, s3", f"s_cselect_b32 {s(d2)}, 24, 10", f"s_movk_i32 {s(sSt)}, 1280",
                  f"s_cselect_b32 {s(sSt)}, 3072, {s(sSt)}",
                  f"s_mul_i32 {s(d0)}, {s(sU)}, s3", f"s_lshr_b32 {s(d0)}, {s(d0)}, 16",
                  f"s_mul_i32 {s(d1)}, {s(d0)}, {s(d2)}", f"s_sub_u32 {s(d1)}, {s(sU)}, {s(d1)}",
                  f"s_mul_i32 {s(d2)}, {s(d0)}, {s(sSt)}", f"s_lshl_b32 {s(d2)}, {s(d2)}, 5", f"s_lshl_b32 {s(d3)}, {s(d1)}, 7",
                  f"s_add_u32 {s(d2)}, {s(d2)}, {s(d3)}", f"s_add_u32 {s(sB)}, {s(sB)}, {s(d2)}", f"s_addc_u32 {s(sB+1)}, {s(sB+1)}, 0",
                  f"s_mul_i32 {s(sB+2)}, {s(sSt)}, 31", f"s_add_u32 {s(sB+2)}, {s(sB+2)}, 128",
                  f"v_mad_u32_u24 v39, v36, {s(sSt)}, v38", f"s_lshl_b32 {s(sSt)}, {s(sSt)}, 3", f"s_mov_b32 s3, 0"]
            for j in range(4):
                o.append(f"buffer_load_dwordx4 {v(64+16*r+4*j,4)}, v39, {s(sB,4)}, s3 offen ;#{tg}")
                if j < 3: o.append(f"s_add_u32 s3, s3, {s(sSt)}")
            o += [f"s_mov_b32 {s(sU)}, {s(d0)}", f"s_lshl_b32 s3, {s(d1)}, 2"]
            for t, d in enumerate((d0, d1, d2, d3)):
                o += [f"s_mul_i32 {s(d)}, s3, {s(sMg)}", f"s_lshr_b32 {s(d)}, {s(d)}, 16", f"s_sub_u32 {s(sSt)}, {s(sKS)}, 1",
                      f"s_mul_i32 {s(d)}, {s(d)}, {s(sSt)}", f"s_add_u32 {s(d)}, {s(d)}, {s(sU)}", f"s_mul_i32 {s(d)}, {s(d)}, {s(sG)}",
                      f"s_add_u32 {s(d)}, {s(d)}, s3", f"s_lshl_b32 {s(d)}, {s(d)}, 10", f"s_add_u32 {s(d)}, {s(d)}, {s(sDs)}",
                      f"s_add_u32 s3, s3, 1"]
            return o
        Lx = self.lab("x")
        A([f"s_and_b32 s3, {s(sDl)}, 127", "s_cmp_eq_u32 s3, 0", f"s_cbranch_scc0 {Lx}"])
        A(unit(3, "opt")); A.label(Lx)
        A(unit(0, "rp"))
        A(["s_WAITVM ln", "s_barrier"]); A(list(self.set_flag(F_XQ)))
        A(self.stamp("F0 set"))
        A(unit(1, "rp")); A(unit(2, "rp"))
        A([f"s_lshl_b32 {s(sT0)}, {s(sWv)}, 12", f"s_add_u32 {s(sT0)}, {s(sT0)}, {SPARE}",
           "v_and_b32 v14, 6, v36", "v_xor_b32 v14, v14, v37", "v_lshlrev_b32 v14, 4, v14", "v_lshl_add_u32 v40, v36, 7, v14", f"v_add_u32 v40, {s(sT0)}, v40",
           "v_lshrrev_b32 v14, 2, v0", "v_and_b32 v15, 6, v14", "v_lshlrev_b32 v15, 4, v15", "v_lshl_add_u32 v41, v14, 7, v15",
           "v_and_b32 v15, 3, v0", "v_lshl_add_u32 v41, v15, 3, v41", f"v_add_u32 v41, {s(sT0)}, v41",
           "v_xor_b32 v42, 32, v41", "v_xor_b32 v43, 64, v41", "v_xor_b32 v44, 0x60, v41",
           "v_and_b32 v13, 31, v0", "v_lshlrev_b32 v13, 2, v13", f"s_lshl_b32 {s(sT0)}, {s(sQt)}, 7", f"v_add_u32 v13, {s(sT0)}, v13"])
        A(self.poll_issue(45, 13, "p0"))
        def proc(r):
            o = [f"ds_write_b128 v40, {v(64+16*r+4*j,4)} offset:{j*1024}" for j in range(4)]
            for t in range(4):
                for hf in range(2): o.append(f"ds_read_b64_tr_b16 {v(128+16*r+4*t+2*hf,2)}, {v(41+t)} offset:{hf*2048}")
            return o
        A("s_WAITVM rp")
        for r in range(4): A(proc(r))
        A(self.stamp("repack lds"))
        A(list(self.poll_check(45, 13, "p0")))
        A(self.stamp("F0 ok"))
        A([f"s_mul_i32 {s(sT0)}, {s(sH4)}, 20480"])
        for ks in range(20):
            if ks and ks % 4 == 0: A(f"s_add_u32 {s(sT0)}, {s(sT0)}, 4096")
            A(f"buffer_load_dwordx4 {a(160+4*ks,4)}, v9, {s(sD,4)}, {s(sT0)} offen offset:{(ks%4)*1024} sc1 ;#p1b")
        A(["v_and_b32 v14, 15, v0", "v_lshlrev_b32 v14, 2, v14", f"s_lshl_b32 {s(sT0)}, {s(sRbP)}, 6", f"s_add_u32 {s(sT0)}, {s(sT0)}, {WS_RT}",
           f"buffer_load_dword v8, v14, {s(sE,4)}, {s(sT0)} offen sc1 ;#p1b"])
        A("s_waitcnt lgkmcnt(0)")
        Ly = self.lab("y")
        A([f"s_and_b32 s3, {s(sDl)}, 127", "s_cmp_eq_u32 s3, 0", f"s_cbranch_scc0 {Ly}"])
        for t in range(4): A(f"buffer_store_dwordx4 {v(128+48+4*t,4)}, v9, {s(sE,4)}, {s(DST[12+t])} offen sc1 ;#opt")
        A.label(Ly)
        for r in range(3):
            for t in range(4): A(f"buffer_store_dwordx4 {v(128+16*r+4*t,4)}, v9, {s(sE,4)}, {s(DST[4*r+t])} offen sc1 ;#rps")
        A(self.x_loads(0)); A(self.x_loads(1))

    def p1(self):
        A = self.A
        va, ring, acc = 4, 16, 224
        A(["v_lshrrev_b32 v14, 2, v0", "v_mul_u32_u24 v4, 160, v14", "v_and_b32 v15, 3, v0", "v_lshl_add_u32 v4, v15, 3, v4",
           f"v_add_u32 v5, {2*SLOT}, v4", f"v_add_u32 v6, {4*SLOT}, v4"])
        A(["s_WAITVM p1b", "s_barrier"])
        A(self.stamp("P1 start"))
        steps = [(2*kp+u, j) for kp in range(10) for j in range(5) for u in range(2)]
        N = len(steps); R = 10; PD = 7
        def rd(n):
            ks, j = steps[n]; F = ring + 4*(n % R); r = ks // 4
            off = (r % 2)*SLOT + (ks % 4)*5120 + j*32
            return [f"ds_read_b64_tr_b16 {v(F,2)}, {v(va + r//2)} offset:{off}", f"ds_read_b64_tr_b16 {v(F+2,2)}, {v(va + r//2)} offset:{off+2560}"]
        for n in range(PD): A(rd(n))
        for n in range(N):
            ks, j = steps[n]
            A(f"s_waitcnt lgkmcnt({2*min(PD-1, N-1-n)})")
            A(mfma(v(acc+4*j, 4), v(ring + 4*(n % R), 4), a(160+4*ks, 4), "0" if ks == 0 else None))
            if n == 40:
                A("s_barrier"); A(self.item(6)); A(self.item(7)); A(self.x_loads(2))
            if n + PD < N: A(rd(n + PD))
        A(["v_lshrrev_b32 v14, 2, v0", "v_mul_u32_u24 v6, 384, v14", "v_and_b32 v14, 6, v14", "v_and_b32 v15, 3, v0",
           "v_xor_b32 v14, v14, v15", "v_lshl_add_u32 v6, v14, 4, v6", f"v_add_u32 v6, {5*SLOT}, v6", "v_xor_b32 v7, 64, v6"])
        A(["s_WAITVM rps", "s_barrier"]); A(list(self.set_flag(F_RP)))
        A(self.item(8)); A(self.x_loads(3))
        A(w_reads(Fa, 0))
        A(self.stamp("P1 gemm"))
        A([f"s_lshr_b32 {s(sT0)}, {s(sX8)}, 2", f"s_add_u32 {s(sT0)}, {s(sT0)}, 1", f"s_sub_u32 {s(sT1)}, 0, {s(sT0)}",
           f"s_bitcmp1_b32 {s(sX8)}, 1", f"s_cselect_b32 {s(sT0)}, {s(sT1)}, {s(sT0)}",
           f"s_lshl_b32 {s(sT1)}, {s(sRbP)}, 4", f"s_add_u32 {s(sT0)}, {s(sT0)}, {s(sT1)}",
           "v_and_b32 v14, 15, v0", f"v_add_u32 v14, {s(sT0)}, v14", f"s_movk_i32 {s(sT1)}, 2048", f"v_cmp_gt_u32 {s(sMsk,2)}, {s(sT1)}, v14",
           "v_and_b32 v14, 2047, v14", "v_lshrrev_b32 v15, 4, v14", "v_mul_u32_u24 v5, 20480, v15",
           "v_and_b32 v14, 15, v14", "v_lshl_add_u32 v5, v14, 4, v5", "v_and_b32 v14, 48, v0", "v_lshl_add_u32 v5, v14, 4, v5",
           f"v_add_u32 v5, {WS_HS}, v5",
           f"s_mov_b32 {s(sT0)}, {fx(-GK*0.044715)}", f"v_mov_b32 v4, {fx(-GK)}"])
        for r in range(20): A(f"v_mul_f32 {v(acc+r)}, {v(acc+r)}, v8")
        T = 200
        A(gelu_ops(list(range(acc, acc+20)), list(range(T, T+20)), sT0, 4))
        for j in range(10): A(f"v_cvt_pk_bf16_f32 {v(T+j)}, {v(acc+2*j)}, {v(acc+2*j+1)}")
        for j in range(10): A(f"v_cndmask_b32 {v(T+j)}, 0, {v(T+j)}, {s(sMsk,2)}")
        for j in range(5):
            A(tile_off(56+j, sX8, j))
            A(f"buffer_store_dwordx2 {v(T+2*j,2)}, v5, {s(sE,4)}, {s(56+j)} offen sc1 ;#hs")
        A(self.stamp("P1 done"))

    def conv(self, dt):
        out = []
        ks, h = dt // 2, dt % 2
        for qb in range(4):
            src = Qacc(dt, qb)
            for u in range(2):
                d = v(vT+u) if ks < 4 else v(vQ+((ks-4)*4+qb)*4+2*h+u)
                out.append(f"v_cvt_pk_bf16_f32 {d}, {v(src+2*u)}, {v(src+2*u+1)}")
            if ks < 4:
                for u in range(2): out.append(f"v_accvgpr_write_b32 {a(aQ+(ks*4+qb)*4+2*h+u)}, {v(vT+u)}")
        return out
    def p2_rd(self, n):
        kp, j = divmod(n, 5)
        o = []
        for u in range(2):
            ks = 2*kp+u; slot = (15 + ks//4) % 6
            o.append(f"ds_read_b128 {v(16 + 8*(n % 6) + 4*u, 4)}, {v((9, 4, 5)[slot//2])} offset:{(slot%2)*SLOT + ((ks%4)*5+j)*1024}")
        return o
    def qproj(self):
        A = self.A
        A([f"s_mul_i32 {s(sT0)}, {s(sX8)}, {20*5120}", f"s_add_u32 {s(sT0)}, {s(sT0)}, {s(sW5)}"])
        A(srd(sA, pWs, sT0, WS_W2P, 20*5120, sW5))
        A("s_WAITVM xq0 lgkm")
        left = []
        for t in range(10):
            mf = []; fill = {}
            add = lambda g, xs: fill.setdefault(g, []).extend(xs if isinstance(xs, list) else [xs])
            for p in range(4):
                F = Fa if p % 2 == 0 else Fb
                for d in range(3):
                    for qb in range(4):
                        for ks in range(2):
                            C = "0" if (t == 0 and ks == 0) else None
                            mf.append(mfma(v(Qacc(3*p+d, qb), 4), v(F+(d*2+ks)*4, 4), a((t%8)*32+(ks*4+qb)*4, 4), C))
            for p in range(4):
                b = 24*p
                Fn = Fb if p % 2 == 0 else Fa
                if p < 3: rd = w_reads(Fn, p+1)
                elif t < 9: rd = w_reads(Fn, 0)
                else: rd = self.p2_rd(0) + self.p2_rd(1) + self.p2_rd(2)
                for n in range(0, len(rd), 2): add(b + n, rd[n:n+2])
                if p == 2:
                    tg = f"it{6+t},xq{t+1}" if t < 9 else "it15,it16,it17,p2b"
                    if t == 1: tg += ",hs"
                    add(b+23, [f"s_WAITVM {tg} lgkm", "s_barrier"])
                    if t < 9:
                        dl = SLOT if (6+t) % 6 != 0 else -5*SLOT
                        add(b+21, [f"s_mov_b32 {s(sDl)}, {dl}", f"v_add_u32 v6, {s(sDl)}, v6", f"v_add_u32 v7, {s(sDl)}, v7"])
                elif not (t == 9 and p == 3):
                    add(b+23, "s_waitcnt lgkmcnt(0)")
            q = self.item(9+t) + (self.x_loads(t+4) if t+4 < 10 else [])
            if t == 9: q += self.item(19)
            if t == 8:
                q += [f"s_mul_i32 {s(sT0)}, {s(sRbP)}, 20480", f"s_add_u32 {s(sT1)}, {s(sT0)}, {WS_HS + 10*1024}"]
                for ks in range(10, 20):
                    if ks > 10 and (ks-10) % 4 == 0: q.append(f"s_add_u32 {s(sT1)}, {s(sT1)}, 4096")
                    q.append(f"buffer_load_dwordx4 {a(64+4*ks,4)}, v9, {s(sE,4)}, {s(sT1)} offen offset:{((ks-10)%4)*1024} sc1 ;#p2b")
            gaps = [g for g in range(1, 69, 2) if g % 24 < 21]
            gi = 0; pend = []
            nl = sum(1 for x in q if not x.startswith("s_"))
            step = 2 if nl <= 15 else 1
            for x in q:
                if x.startswith("s_"): pend.append(x)
                else:
                    g = gaps[gi]; gi += step
                    if step == 2:
                        for n, y in enumerate(pend): add(max(g - len(pend) + n + 1, 0), y)
                    else:
                        for n, y in enumerate(pend): add(g - 1 if n < len(pend) - 1 else g, y)
                    pend = []
                    add(g, x)
            if t == 1: add(86, self.set_flag(F_HS))
            if t == 2:
                add(86, (f"s_lshl_b32 {s(sT0)}, {s(sQt)}, 2", f"s_add_u32 {s(sT0)}, {s(sT0)}, {s(sWv)}",
                         "v_min_u32 v14, 17, v0", "v_lshlrev_b32 v14, 7, v14", f"s_mul_i32 {s(sT1)}, {s(sT0)}, {18*128}"))
                add(88, (f"s_mul_i32 {s(sXo)}, {s(sHead)}, 786432", f"s_add_u32 {s(sT1)}, {s(sT1)}, {s(sXo)}", f"v_add_u32 v14, {s(sT1)}, v14",
                         f"global_load_dword v8, v14, {s(pK,2)} ;#tch"))
                add(90, ("v_min_u32 v15, 11, v0", "v_lshlrev_b32 v15, 7, v15", f"s_mul_i32 {s(sT1)}, {s(sT0)}, {12*128}",
                         f"s_add_u32 {s(sT1)}, {s(sT1)}, {s(sXo)}"))
                add(92, (f"v_add_u32 v15, {s(sT1)}, v15", f"global_load_dword v8, v15, {s(pV,2)} ;#tch"))
            if t == 3:
                add(86, (f"s_lshl_b32 {s(sT0)}, {s(sWv)}, 8", f"s_add_u32 {s(sT0)}, {s(sT0)}, {F_RP*1024}",
                         "v_lshlrev_b32 v4, 2, v0", f"v_add_u32 v4, {s(sT0)}, v4"))
                add(88, self.poll_issue(5, 4, "prp"))
            if t == 5:
                add(66, self.poll_check(5, 4, "prp"))
                add(86, (f"s_cmp_eq_u32 {s(sH4)}, 0", f"s_cselect_b32 {s(sT0)}, 7, 0", f"s_cmp_eq_u32 {s(sH4)}, 3", f"s_cselect_b32 {s(sT0)}, 1, {s(sT0)}",
                         f"s_add_u32 {s(sT0)}, {s(sT0)}, {s(sQt)}", f"s_and_b32 {s(sT0)}, {s(sT0)}, 7", f"s_sub_u32 {s(sT0)}, {s(sT0)}, {s(sQt)}",
                         f"s_lshl_b32 {s(sT0)}, {s(sT0)}, 7"))
                add(88, ("v_lshrrev_b32 v4, 5, v0", f"v_mul_lo_u32 v4, v4, {s(sT0)}"))
                add(90, (f"v_add_u32 v4, v4, v13", f"v_add_u32 v4, {F_HS*1024}, v4"))
                add(92, self.poll_issue(5, 4, "phs"))
            if t == 7:
                add(72+13, self.poll_check(5, 4, "phs"))
                add(72+14, (f"s_mul_i32 {s(sT0)}, {s(sRbP)}, 20480", f"s_add_u32 {s(sT1)}, {s(sT0)}, {WS_HS}"))
                g = 72+15
                for ks in range(10):
                    x = f"buffer_load_dwordx4 {a(64+4*ks,4)}, v9, {s(sE,4)}, {s(sT1)} offen offset:{(ks%4)*1024} sc1 ;#p2b"
                    if ks and ks % 4 == 0: add(g + ks//2, (f"s_add_u32 {s(sT1)}, {s(sT1)}, 4096", x))
                    else: add(g + ks//2, (x,))
            if t == 8:
                add(72+13, (f"s_mul_i32 {s(sT0)}, {s(sRbP)}, 20480", f"s_add_u32 {s(sT0)}, {s(sT0)}, {WS_XN}"))
                for j in range(5):
                    add(72+14+j, (f"s_add_u32 {s(sT1)}, {s(56+j)}, {s(sT0)}",
                                  f"buffer_load_dwordx2 {a(144+2*j,2)}, v9, {s(sE,4)}, {s(sT1)} offen sc1 ;#p2b"))
                add(72+20, (f"v_add_u32 v4, {2*SLOT}, v9", f"v_add_u32 v5, {4*SLOT}, v9"))
            if t == 9:
                g = 72+7
                for x in self.item(20):
                    add(g, x); g += 1
                qq = []
                for dt in range(9): qq += [(8*dt + 8 + 5, x) for x in self.conv(dt)]
                fill, left = greedy(mf, qq, fill)
            A.c(f"qproj tile {t}")
            A(weave(mf, fill))
        k = max([i for i, x in enumerate(left) if "accvgpr" in x] + [-1]) + 1
        A(left[:k]); left = left[k:]
        assert not any(("v", r) in I(x).r for x in left for r in range(96, 160))
        self.qleft = left + self.conv(9) + self.conv(10) + self.conv(11)

    def p2(self):
        A = self.A
        acc = 96
        A(self.stamp("qproj done"))
        N = 50; PD = 3
        ql = list(self.qleft)
        first = True
        for n in range(N):
            kp, j = divmod(n, 5)
            A(f"s_waitcnt lgkmcnt({2*min(PD-1, N-1-n)})")
            nx = self.p2_rd(n+PD) if n + PD < N else []
            if (n + PD) == 30:
                A(["s_WAITVM it18,it19", "s_barrier"]); A(self.item(21)); A(self.item(22))
            for u in range(2):
                ks = 2*kp+u
                A(mfma(v(acc+4*j, 4), v(16 + 8*(n % 6) + 4*u, 4), a(64+4*ks, 4), "0" if ks == 0 else None))
                if nx: A(nx[u])
                if ql and n >= 3: A(ql.pop(0))
        A(ql)
        A(["v_and_b32 v14, 15, v0", "v_mul_u32_u24 v4, 384, v14", "v_and_b32 v14, 6, v14", "v_lshrrev_b32 v15, 4, v0",
           "v_xor_b32 v14, v14, v15", "v_lshl_add_u32 v4, v14, 4, v4", f"v_add_u32 v4, {2*SLOT}, v4", "v_xor_b32 v5, 64, v4"])
        A(["s_WAITVM it20", "s_barrier"])
        A(k_reads(Fa, 0))
        A(self.item(23)); A(self.item(24))
        A(self.stamp("P2 gemm"))
        T, RS = 120, 140
        for j in range(10): A(f"v_accvgpr_read_b32 {v(RS+j)}, {a(144+j)}")
        for j in range(10): A([f"v_lshlrev_b32 {v(T+2*j)}, 16, {v(RS+j)}", f"v_and_b32 {v(T+2*j+1)}, 0xffff0000, {v(RS+j)}"])
        for j in range(10): A(f"v_pk_add_f32 {v(acc+2*j,2)}, {v(acc+2*j,2)}, {v(T+2*j,2)}")
        for j in range(10): A(f"v_cvt_pk_bf16_f32 {v(RS+j)}, {v(acc+2*j)}, {v(acc+2*j+1)}")
        A([f"s_mul_i32 {s(sT0)}, {s(sRbP)}, 20480", f"s_add_u32 {s(sT0)}, {s(sT0)}, {WS_X1}"])
        for j in range(5):
            A([f"s_add_u32 {s(sT1)}, {s(56+j)}, {s(sT0)}", f"buffer_store_dwordx2 {v(RS+2*j,2)}, v9, {s(sE,4)}, {s(sT1)} offen sc1 ;#x1"])
        for j in range(10): A([f"v_lshlrev_b32 {v(T+2*j)}, 16, {v(RS+j)}", f"v_and_b32 {v(T+2*j+1)}, 0xffff0000, {v(RS+j)}"])
        A([f"v_pk_add_f32 v[152:153], {v(T,2)}, {v(T+2,2)}", f"v_pk_mul_f32 v[154:155], {v(T,2)}, {v(T,2)}",
           f"v_pk_fma_f32 v[154:155], {v(T+2,2)}, {v(T+2,2)}, v[154:155]"])
        for j in range(2, 10):
            A([f"v_pk_add_f32 v[152:153], v[152:153], {v(T+2*j,2)}", f"v_pk_fma_f32 v[154:155], {v(T+2*j,2)}, {v(T+2*j,2)}, v[154:155]"])
        A(["v_add_f32 v152, v152, v153", "v_add_f32 v153, v154, v155"])
        A(xlane([152, 153], [154, 155]))
        A([f"s_lshl_b32 {s(sT0)}, {s(sRbP)}, 10", f"s_lshl_b32 {s(sT1)}, {s(sX8)}, 3", f"s_add_u32 {s(sT0)}, {s(sT0)}, {s(sT1)}",
           f"s_add_u32 {s(sT0)}, {s(sT0)}, {WS_ST}", "v_and_b32 v14, 15, v0", "v_lshlrev_b32 v14, 6, v14",
           f"buffer_store_dwordx2 v[152:153], v14, {s(sE,4)}, {s(sT0)} offen sc1 ;#x1"])
        L = self.lab("e")
        A([f"v_mov_b32 v250, 0", f"s_cmp_lg_u32 {s(sWv)}, 0", f"s_cbranch_scc1 {L}", "v_mov_b32 v14, 0", "v_mov_b32 v15, 1", "s_mov_b64 exec, 1",
           f"global_atomic_add v250, v14, v15, {s(pDbg,2)} sc0 sc1 ;#opt", "s_mov_b64 exec, -1", L + ":"])
        A([f"s_lshr_b32 {s(sT0)}, {s(sHead)}, 1", f"s_mul_i32 {s(sT0)}, {s(sT0)}, {5*SLOT}", f"s_add_u32 {s(sT0)}, {s(sT0)}, {s(sWoff)}",
           f"s_add_u32 {s(sT0)}, {s(sT0)}, {WS_W3P - 32*SLOT}",
           f"s_add_u32 {s(sSwK)}, {s(pWs)}, {s(sT0)}", f"s_addc_u32 {s(sSwK+1)}, {s(pWs+1)}, 0", f"s_sub_u32 {s(sSwK+2)}, {35*SLOT}, {s(sWoff)}",
           f"s_add_u32 {s(sSwV)}, {s(sSwK)}, {3*SLOT}", f"s_addc_u32 {s(sSwV+1)}, {s(sSwK+1)}, 0", f"s_sub_u32 {s(sSwV+2)}, {34*SLOT}, {s(sWoff)}"])
        A(["v_mov_b32 v251, v13",
           "v_lshrrev_b32 v14, 2, v0", "v_mul_u32_u24 v6, 384, v14", "v_and_b32 v14, 6, v14", "v_lshl_add_u32 v6, v14, 4, v6",
           "v_and_b32 v15, 3, v0", "v_lshl_add_u32 v6, v15, 3, v6", f"v_add_u32 v6, {4*SLOT}, v6",
           "v_xor_b32 v7, 32, v6", "v_xor_b32 v8, 64, v6", "v_xor_b32 v9, 0x60, v6"])
        for r in range(4): A(f"v_mov_b32 {v(vP[1]+r)}, 0")
        for r in range(4): A(f"v_mov_b32 {v(vL+r)}, 0")
        A("s_waitcnt lgkmcnt(0)")
        A(self.stamp("P2 done"))

    def attn(self):
        A, name = self.A, self.name
        A.c("iteration -1")
        Sx = [vFree, vFree+16, vFree+32, vS]
        mf = q_mfmas(Fa, Sx[0], zeroC=True)
        vz = v(vP[1], 4)
        mf += [mfma(a(4*n, 4), vz, vz, "0") for n in range(48)]
        mf += q_mfmas(Fb, Sx[1]) + q_mfmas(Fa, Sx[2]) + q_mfmas(Fb, Sx[3])
        fill = {}
        add = lambda g, xs: fill.setdefault(g, []).extend(xs if isinstance(xs, list) else [xs])
        def rd(g0, lst):
            for n in range(0, len(lst), 2): add(g0 + n//2, lst[n:n+2])
        rd(0, k_reads(Fb, 1)); rd(24, k_reads(Fa, 2))
        add(71, "s_waitcnt lgkmcnt(0)")
        rd(96, k_reads(Fb, 3))
        add(100, [f"v_add_u32 v4, {SLOT}, v4", f"v_add_u32 v5, {SLOT}, v5"])
        add(119, ["s_WAITVM it21,it22,x1 lgkm", "s_barrier"])
        rd(120, k_reads(Fa, 0))
        add(121, f"s_mov_b32 {s(sRa)}, 0"); add(122, f"s_mov_b32 {s(sRb)}, {2*SLOT}"); add(123, f"s_mov_b32 {s(sRc)}, {4*SLOT}")
        add(124, f"s_mov_b32 {s(sKo)}, {3*SLOT}"); add(125, f"s_mov_b32 {s(sVo)}, {2*SLOT}")
        add(126, f"s_add_u32 m0, {s(sWoff)}, {SLOT}")
        for n, x in enumerate(dma3(sK, sKo)): add(128+2*n, x)
        add(127, f"s_mov_b32 {s(sCnt)}, 0")
        add(124, self.set_flag(F_X1))
        q = []
        tA, tB = vFree+48, vFree+52
        for qb in range(4):
            s0 = Sx[0] + 4*qb
            q += [(6*qb+5+6, f"v_max3_f32 {v(tA+qb)}, {v(s0)}, {v(s0+1)}, {v(s0+2)}"), (0, f"v_max_f32 {v(tA+qb)}, {v(tA+qb)}, {v(s0+3)}")]
        q += [(0, x) for x in xlane([tA+i for i in range(4)], [tB+i for i in range(4)], "v_max_f32")]
        for qb in range(4):
            for r in range(4): q += [(0, f"v_sub_f32 {v(vNm+4*qb+r)}, 0, {v(tA+qb)}")]
        for qb in range(4):
            for r in range(4): q += [(0, f"v_sub_f32 {v(Sx[0]+4*qb+r)}, {v(Sx[0]+4*qb+r)}, {v(tA+qb)}")]
        tail = softmax_tail(0)
        for blk in range(4):
            for qb in range(4):
                gs = softmax_groups(Sx[blk], qb, blk, 0)
                if blk == 3 and qb == 3: gs = gs[:len(gs)-len(tail)]
                e0 = 0 if blk == 0 else 72 + 24*(blk-1) + 6*qb + 5 + 5
                for gg in gs: q += [(e0, x) for x in gg]
        fill, left = greedy(mf, q, fill)
        seq = weave(mf, fill)
        iw = max(i for i, x in enumerate(seq) if x.startswith("v_sub_f32") and ", 0, " in x)
        iu = min(i for i, x in enumerate(seq) if x.startswith("v_mfma") and v(vNm, 4) in x)
        assert iw < iu
        A(seq); A(left)
        A("s_waitcnt lgkmcnt(0)")
        A(self.stamp("iter-1"))
        A(".p2align 6")
        A.label(f"{name}_loop")
        b0 = weave(*body(0)); b1 = weave(*body(1))
        assert check_linear(b0 + b1 + b0, "loop") == 0
        A(b0)
        A([f"s_cmp_eq_u32 {s(sCnt)}, 15", f"s_cbranch_scc1 {name}_last"])
        A(b1)
        c1, c2, c3 = 3, 5, 11
        A([f"s_add_u32 {s(sCnt)}, {s(sCnt)}, 1", f"s_bitcmp1_b32 {(1<<c1)|(1<<c2)|(1<<c3)}, {s(sCnt)}", f"s_cbranch_scc0 {name}_loop"])
        A([f"s_cmp_eq_u32 {s(sCnt)}, {c1}", f"s_cbranch_scc0 {name}_o2",
           f"v_add_u32 v252, {F_X1*1024}, v251", self.poll_issue(253, 252, "opt"), f"s_branch {name}_loop"])
        A.label(f"{name}_o2")
        A([f"s_cmp_eq_u32 {s(sCnt)}, {c2}", f"s_cbranch_scc0 {name}_o3"])
        A(list(self.poll_check(253, 252)))
        A([f"v_readfirstlane_b32 {s(sT0)}, v250", "s_nop 0", f"s_cmp_eq_u32 {s(sT0)}, 255", f"s_cbranch_scc0 {name}_loop",
           f"v_mov_b32 v14, {s(sTag)}", f"s_movk_i32 {s(sT0)}, {WS_EPOCH - WS_FLAG}", "s_mov_b64 exec, 1",
           f"buffer_store_dword v14, off, {s(sF,4)}, {s(sT0)} sc1 ;#opt", "s_mov_b64 exec, -1", f"s_branch {name}_loop"])
        A.label(f"{name}_o3")
        A([f"s_lshl_b32 {s(sT0)}, {s(sQt)}, 2", f"s_add_u32 {s(sT0)}, {s(sT0)}, {s(sWv)}",
           f"s_mul_i32 {s(sT3)}, {s(sT0)}, {60*128}", "v_min_u32 v14, 59, v0", "v_lshlrev_b32 v14, 7, v14", f"v_add_u32 v14, {s(sT3)}, v14",
           f"s_mul_i32 {s(sT1)}, {s(sH4)}, 8", f"s_add_u32 {s(sT1)}, {s(sT1)}, {s(sX8)}", f"s_mul_i32 {s(sT1)}, {s(sT1)}, {24*10240}",
           f"s_add_u32 {s(sT1)}, {s(sT1)}, {WS_WOP}", f"buffer_load_dword v254, v14, {s(sE,4)}, {s(sT1)} offen sc1 ;#opt",
           f"s_and_b32 {s(sT1)}, {s(sX8)}, 1", f"s_lshl_b32 {s(sT2)}, {s(sH4)}, 1", f"s_add_u32 {s(sT1)}, {s(sT1)}, {s(sT2)}",
           f"s_mul_i32 {s(sT1)}, {s(sT1)}, {48*5120}", f"s_add_u32 {s(sT1)}, {s(sT1)}, {WS_W4P}",
           f"buffer_load_dword v254, v14, {s(sE,4)}, {s(sT1)} offen sc1 ;#opt",
           f"s_and_b32 {s(sT1)}, {s(sH4)}, 1", f"s_lshl_b32 {s(sT1)}, {s(sT1)}, 5", f"s_add_u32 {s(sT0)}, {s(sT0)}, {s(sT1)}",
           f"s_mul_i32 {s(sT0)}, {s(sT0)}, {15*128}", f"s_lshr_b32 {s(sT1)}, {s(sHead)}, 1", f"s_mul_i32 {s(sT1)}, {s(sT1)}, {5*SLOT}",
           f"s_add_u32 {s(sT0)}, {s(sT0)}, {s(sT1)}", f"s_add_u32 {s(sT0)}, {s(sT0)}, {WS_W3P}",
           "v_min_u32 v15, 14, v0", "v_lshlrev_b32 v15, 7, v15", f"buffer_load_dword v254, v15, {s(sE,4)}, {s(sT0)} offen sc1 ;#opt",
           f"s_branch {name}_loop"])
        A.label(f"{name}_last")
        A(["VMRESET", "VMFAKE w3 15"])
        A.c("iteration 31")
        A(self.stamp("loop"))
        A(v_reads(Fb, 0))
        for gg in softmax_tail(1): A(gg)
        A(xlane([vL+i for i in range(4)], [vFree+i for i in range(4)]))
        for qb in range(4): A(f"v_rcp_f32 {v(vL+qb)}, {v(vL+qb)}")
        A("v_lshlrev_b32 v4, 4, v0")
        A([f"s_lshl_b32 {s(sT0)}, {s(sQt)}, 2", f"s_add_u32 {s(sT0)}, {s(sT0)}, {s(sWv)}", f"s_mul_i32 {s(sT0)}, {s(sT0)}, {4*192*1024}",
           f"s_mul_i32 {s(sT1)}, {s(sX8)}, {24*1024}", f"s_add_u32 {s(sT0)}, {s(sT0)}, {s(sT1)}"])
        A(srd(sA, pWs, sT0, WS_O, 3*192*1024 + 24*1024))
        A([f"s_lshl_b32 {s(sRbP)}, {s(sQt)}, 1", f"s_and_b32 {s(sT0)}, {s(sHead)}, 1", f"s_add_u32 {s(sRbP)}, {s(sRbP)}, {s(sT0)}",
           f"s_lshl_b32 {s(sRbP)}, {s(sRbP)}, 2", f"s_add_u32 {s(sRbP)}, {s(sRbP)}, {s(sWv)}", f"s_lshl_b32 {s(sRbP)}, {s(sRbP)}, 1",
           f"s_mul_i32 {s(sT0)}, {s(sRbP)}, 20480"])
        A(srd(sB, pWs, sT0, WS_X1, 40960))
        A([f"s_mul_i32 {s(sXo)}, {s(sH4)}, 6144"])
        A("s_waitcnt lgkmcnt(0)")
        mf = []; fill = {}
        add = lambda g, xs: fill.setdefault(g, []).extend(xs if isinstance(xs, list) else [xs])
        for i in range(4):
            mf += p_mfmas(Fb if i % 2 == 0 else Fa, i, 1)
            if i < 3:
                lst = v_reads(Fa if i % 2 == 0 else Fb, i+1)
                for n in range(0, 12, 2): add(24*i + n, lst[n:n+2])
                add(24*i+23, "s_waitcnt lgkmcnt(0)")
        q = []
        for i in range(3):
            sc, d = dma_group(i)
            q.append((0, tuple(sc + ["s_nop 0"] + tag(d[:1], "w3")))); q += [(0, x) for x in tag(d[1:], "w3")]
        q.append((0, ("v_and_b32 v14, 15, v0", "v_lshlrev_b32 v5, 6, v14", "v_and_b32 v14, 48, v0", "v_add_u32 v5, v5, v14",
                      f"s_lshl_b32 {s(sT0)}, {s(sRbP)}, 10", f"s_add_u32 {s(sT0)}, {s(sT0)}, {WS_ST}")))
        for mb in range(2): q.append((0, f"buffer_load_dwordx4 {v(248+4*mb,4)}, v5, {s(sE,4)}, {s(sT0)} offen offset:{mb*1024} sc1 ;#x1f"))
        for kq in range(5):
            for mb in range(2):
                xs = [f"s_mov_b32 {s(sXo+1+mb)}, {mb*20480 + kq*4096}"]
                for u in range(4):
                    xs.append(f"buffer_load_dwordx4 {self.X1f(4*kq+u, mb)}, v4, {s(sB,4)}, {s(sXo+1+mb)} offen offset:{u*1024} sc1 ;#x1f")
                q.append((0, tuple(xs[:3]))); q.append((0, tuple(xs[3:])))
        nb = 0
        for kk in range(6):
            for qb in range(4):
                T = vFree + 8 + (nb % 4)*12; nb += 1
                e0 = 8*(2*kk+1) + 2*qb + 1 + 5
                for h in range(2):
                    for r in range(4): q.append((e0, f"v_accvgpr_read_b32 {v(T+4*h+r)}, {a(((2*kk+h)*4+qb)*4+r)}"))
                for r in range(8): q.append((e0, f"v_mul_f32 {v(T+r)}, {v(T+r)}, {v(vL+qb)}"))
                for r in range(4): q.append((e0, f"v_cvt_pk_bf16_f32 {v(T+8+r)}, {v(T+2*r)}, {v(T+2*r+1)}"))
                q.append((e0, f"s_add_u32 {s(sT0)}, {s(sXo)}, {qb*192*1024 + (kk//4)*4096}"))
                q.append((e0, f"buffer_store_dwordx4 {v(T+8,4)}, v4, {s(sA,4)}, {s(sT0)} offen offset:{(kk%4)*1024} sc1 ;#o"))
                for r in range(4): q.append((e0, f"v_accvgpr_write_b32 {a((kk*4+qb)*4+r)}, {v(T+8+r)}"))
        fill, left = greedy(mf, q, fill)
        A(weave(mf, fill)); A(left)
        A(self.stamp("epilogue"))
    def X1f(self, ks, mb):
        n = ks*2+mb
        return a(192+4*n, 4) if n < 16 else v(64+4*(n-16), 4)

    SEQ = [0, 5, 1, 3, 2, 4]
    def titem(self, n):
        slot = self.SEQ[n % 6]
        if n < 12:
            ex = [f"s_add_u32 {s(sT2)}, {s(sKo)}, {n*20480}", f"s_cmp_ge_u32 {s(sT2)}, {12*20480}",
                  f"s_cselect_b32 {s(sT3)}, {12*20480}, 0", f"s_sub_u32 {s(sT2)}, {s(sT2)}, {s(sT3)}"]
            return self.lin_item(slot, sC, ex, f"t{n}")
        return self.lin_item(slot, sD, [f"s_mov_b32 {s(sT2)}, {(n-12)*20480}"], f"t{n}")

    def p3(self):
        A, name = self.A, self.name
        acc, cs, ONE, ST = 160, 208, 232, 248
        W3SLOT = [5, 1, 3, 2, 4]
        A(["v_mov_b32 v9, v4"])
        A([f"s_mul_i32 {s(sT0)}, {s(sH4)}, 8", f"s_add_u32 {s(sT0)}, {s(sT0)}, {s(sX8)}", f"s_mul_i32 {s(sT0)}, {s(sT0)}, {24*10240}",
           f"s_add_u32 {s(sT0)}, {s(sT0)}, {s(sW5)}"])
        A(srd(sC, pWs, sT0, WS_WOP, 24*10240, sW5))
        A([f"s_and_b32 {s(sVo)}, {s(sX8)}, 1", f"s_lshl_b32 {s(sT1)}, {s(sH4)}, 1", f"s_add_u32 {s(sVo)}, {s(sVo)}, {s(sT1)}",
           f"s_mul_i32 {s(sT0)}, {s(sVo)}, {48*5120}", f"s_add_u32 {s(sT0)}, {s(sT0)}, {s(sW5)}"])
        A(srd(sD, pWs, sT0, WS_W4P, 48*5120, sW5))
        A(f"s_mul_i32 {s(sKo)}, {s(sH4)}, {3*20480}")
        for j in range(3): A(f"v_add_u32 {v(4+j)}, {W3SLOT[0]*SLOT}, {v(vDma+j)}")
        for r in range(4): A(f"v_mov_b32 {v(ONE+r)}, 0x3f803f80")
        for r in range(24): A(f"v_mov_b32 {v(cs+r)}, 0")
        A(["s_WAITVM w3,x1f", "s_barrier"])
        A(self.titem(0))
        steps = [(kp, j) for kp in range(10) for j in range(6)]
        N = len(steps); R = 6; PD = 3
        def rd(n):
            kp, j = steps[n]
            o = []
            if n % 12 == 0 and n > 0:
                r = n // 12
                dl = (W3SLOT[r] - W3SLOT[r-1])*SLOT
                o += [f"v_add_u32 {v(4+jj)}, {dl & 0xffffffff}, {v(4+jj)}" for jj in range(3)]
            for u in range(2):
                ks = 2*kp+u
                o.append(f"ds_read_b128 {v(16 + 8*(n % R) + 4*u, 4)}, {v(4 + j%3)} offset:{(ks%4)*6144 + j*1024}")
            return o
        for n in range(PD): A(rd(n))
        st = []
        for mb in range(2):
            b = ST + 4*mb
            st += [f"v_add_f32 {v(b)}, {v(b)}, {v(b+2)}", f"v_add_f32 {v(b+1)}, {v(b+1)}, {v(b+3)}"]
        st += xlane([ST, ST+1, ST+4, ST+5], [ST+2, ST+3, ST+6, ST+7])
        for mb in range(2):
            b = ST + 4*mb
            st += [f"v_mul_f32 {v(b)}, {fx(-1.0/640)}, {v(b)}", f"v_mul_f32 {v(b+1)}, {fx(1.0/640)}, {v(b+1)}",
                   f"v_fma_f32 {v(b+1)}, -{v(b)}, {v(b)}, {v(b+1)}", f"v_max_f32 {v(b+1)}, 0, {v(b+1)}",
                   f"v_add_f32 {v(b+1)}, {fx(1e-5)}, {v(b+1)}", f"v_rsq_f32 {v(b+1)}, {v(b+1)}"]
        for n in range(N):
            kp, j = steps[n]
            nx = rd(n + PD) if n + PD < N else []
            A(f"s_waitcnt lgkmcnt({2*min(PD-1, N-1-n)})")
            if n == 24: A("s_barrier"); A(self.titem(1)); A(self.titem(2))
            if n == 48: A("s_barrier"); A(self.titem(3)); A(self.titem(4))
            F = 16 + 8*(n % R)
            k = 0
            for mb in range(2):
                for u in range(2):
                    ks = 2*kp+u
                    A(mfma(v(acc + (j*2+mb)*4, 4), v(F+4*u, 4), self.X1f(ks, mb), "0" if ks == 0 else None))
                    if k == 0: A(nx[:-2])
                    if k == 1: A(nx[-2:])
                    if k >= 2 and st: A(st.pop(0))
                    k += 1
            L = self.lab("c")
            A([f"s_cmp_eq_u32 {s(sWv)}, {(kp + j) % 4}", f"s_cbranch_scc0 {L}"])
            for u in range(2): A(mfma(v(cs + 4*j, 4), v(F+4*u, 4), v(ONE, 4)))
            A.label(L)
        assert not st
        A(["v_and_b32 v14, 48, v0", f"s_mul_i32 {s(sT0)}, {s(sWv)}, 384", f"s_add_u32 {s(sT0)}, {s(sT0)}, {SPARE}",
           f"v_add_u32 v12, {s(sT0)}, v14", f"v_add_u32 v13, {SPARE}, v14", "s_nop 7"])
        for j in range(6): A(f"ds_write_b128 v12, {v(cs+4*j,4)} offset:{j*64}")
        A(["s_WAITVM o lgkm", "s_barrier"]); A(list(self.set_flag(F_O)))
        T = 64
        for w in range(4):
            for j in range(6):
                dst = cs + 4*j if w == 0 else T + (w-1)*24 + 4*j
                A(f"ds_read_b128 {v(dst,4)}, v13 offset:{w*384 + j*64}")
        A(self.titem(5))
        A(self.stamp("P3 gemm"))
        A([f"s_mov_b32 {s(sT0)}, {fx(-GK*0.044715)}", f"v_mov_b32 v11, {fx(-GK)}", "s_waitcnt lgkmcnt(0)"])
        for w in range(3):
            for r in range(12): A(f"v_pk_add_f32 {v(cs+2*r,2)}, {v(cs+2*r,2)}, {v(T+w*24+2*r,2)}")
        for j in range(6):
            for mb in range(2):
                for r in range(2):
                    x = acc + (j*2+mb)*4 + 2*r
                    A(f"v_pk_fma_f32 {v(x,2)}, {v(cs+4*j+2*r,2)}, {v(ST+4*mb,2)}, {v(x,2)} op_sel_hi:[1,0,1]")
        for j in range(6):
            for mb in range(2):
                for r in range(2):
                    x = acc + (j*2+mb)*4 + 2*r
                    A(f"v_pk_mul_f32 {v(x,2)}, {v(x,2)}, {v(ST+4*mb,2)} op_sel:[0,1] op_sel_hi:[1,1]")
        g = gelu_ops(list(range(acc, acc+48)), list(range(T, T+48)), sT0, 11)
        A(g[:48*5])
        A(["v_and_b32 v12, 3, v0", "v_lshlrev_b32 v12, 2, v12", f"s_lshl_b32 {s(sT1)}, {s(sQt)}, 7", f"s_lshl_b32 {s(sT2)}, {s(sX8)}, 4",
           f"s_add_u32 {s(sT1)}, {s(sT1)}, {s(sT2)}", f"s_add_u32 {s(sT1)}, {s(sT1)}, {F_O*1024}", f"v_add_u32 v12, {s(sT1)}, v12"])
        A(self.poll_issue(13, 12, "po"))
        A(g[48*5:])
        A([f"s_mul_i32 {s(sT0)}, {s(sRbP)}, {48*1024}", f"s_lshr_b32 {s(sT1)}, {s(sHead)}, 1", f"s_mul_i32 {s(sT1)}, {s(sT1)}, 3072",
           f"s_add_u32 {s(sT0)}, {s(sT0)}, {s(sT1)}", f"s_add_u32 {s(sT0)}, {s(sT0)}, {WS_U}", f"s_add_u32 {s(sT1)}, {s(sT0)}, {48*1024}"])
        for mb in range(2):
            for kk in range(3):
                t = T + (mb*3+kk)*4
                for h in range(2):
                    x = acc + ((2*kk+h)*2+mb)*4
                    A([f"v_cvt_pk_bf16_f32 {v(t+2*h)}, {v(x)}, {v(x+1)}", f"v_cvt_pk_bf16_f32 {v(t+2*h+1)}, {v(x+2)}, {v(x+3)}"])
                A(f"buffer_store_dwordx4 {v(t,4)}, v9, {s(sE,4)}, {s(sT0+mb)} offen offset:{kk*1024} sc1 ;#u")
        A(self.stamp("P3 done"))

    def o_loads(self, G):
        o = [f"s_add_u32 {s(sXo)}, {s(sH4)}, {G}", f"s_and_b32 {s(sXo)}, {s(sXo)}, 3", f"s_mul_i32 {s(sXo)}, {s(sXo)}, 6144"]
        for hb in range(2):
            for qb in range(4):
                o.append(f"s_add_u32 {s(sXo+1)}, {s(sXo)}, {qb*192*1024 + hb*3072}")
                for u in range(3):
                    kk = 3*hb+u
                    o.append(f"buffer_load_dwordx4 {a(96*(G%2) + (kk*4+qb)*4, 4)}, v9, {s(sA,4)}, {s(sXo+1)} offen offset:{u*1024} sc1 ;#og{G}")
        return o
    def Uf(self, ks):
        if ks < 16: return a(192+4*ks, 4)
        if ks < 40: return a(4*(ks-16), 4)
        return a(96+4*(ks-40), 4)
    def u_loads(self, lo, hi):
        o = []
        for ks in range(lo, hi):
            if ks % 4 == 0: o.append(f"s_add_u32 {s(sXo+2)}, {s(sRa)}, {ks*1024}")
            o.append(f"buffer_load_dwordx4 {self.Uf(ks)}, v9, {s(sE,4)}, {s(sXo+2)} offen offset:{(ks%4)*1024} sc1 ;#u{ks//4}")
        return o
    def lds_lin(self, slot, inner):
        return f"{v((9, 4, 5)[slot//2])} offset:{(slot%2)*SLOT + inner}"

    def oproj(self):
        A = self.A
        ACC, RING, R, PD = 96, 16, 4, 2
        A([f"v_add_u32 v4, {2*SLOT}, v9", f"v_add_u32 v5, {4*SLOT}, v9"])
        A([f"s_lshl_b32 {s(sRbP)}, {s(sQt)}, 2", f"s_lshr_b32 {s(sT0)}, {s(sX8)}, 1", f"s_add_u32 {s(sRbP)}, {s(sRbP)}, {s(sT0)}",
           f"s_lshl_b32 {s(sRbP)}, {s(sRbP)}, 2", f"s_add_u32 {s(sRbP)}, {s(sRbP)}, {s(sWv)}",
           f"s_mul_i32 {s(sRa)}, {s(sRbP)}, {48*1024}", f"s_add_u32 {s(sRa)}, {s(sRa)}, {WS_U}",
           f"s_lshl_b32 {s(sRc)}, {s(sQt)}, 2", f"s_add_u32 {s(sRc)}, {s(sRc)}, {s(sH4)}", f"s_lshl_b32 {s(sRc)}, {s(sRc)}, 3",
           f"s_lshl_b32 {s(sT0)}, {s(sWv)}, 1", f"s_add_u32 {s(sT0)}, {s(sT0)}, {s(sRc)}", f"s_lshl_b32 {s(sT0)}, {s(sT0)}, 3",
           f"s_add_u32 {s(sT0)}, {s(sT0)}, {s(sX8)}", f"s_mul_i32 {s(sRb)}, {s(sT0)}, 10240", f"s_add_u32 {s(sRb)}, {s(sRb)}, {WS_PART}",
           "v_lshlrev_b32 v8, 3, v0"])
        steps = [(st, T) for st in range(9) for T in range(10)] + [(st, T) for T in range(10) for st in range(9, 12)]
        N = len(steps)
        def rd(n):
            st, T = steps[n]
            return [f"ds_read_b128 {v(RING + 8*(n % R) + 4*u, 4)}, {self.lds_lin(self.SEQ[st % 6], (u*10+T)*1024)}" for u in range(2)]
        A(["s_WAITVM t0", "s_barrier"])
        for n in range(PD): A(rd(n))
        A(list(self.poll_check(13, 12, "po")))
        mf = []; fill = {}
        add = lambda g, xs: fill.setdefault(g, []).extend(xs if isinstance(xs, list) else [xs])
        for n, (st, T) in enumerate(steps):
            G = st // 3
            for qb in range(4):
                for u in range(2):
                    kk = (st % 3)*2+u
                    mf.append(mfma(v(ACC + (T*4+qb)*4, 4), v(RING + 8*(n % R) + 4*u, 4), a(96*(G%2) + (kk*4+qb)*4, 4),
                                   "0" if (st == 0 and u == 0) else None))
        q = []
        def seq(e, lst):
            pend = []
            for x in lst:
                if x.startswith("s_"): pend.append(x)
                else:
                    q.append((e, tuple(pend + [x]) if pend else x)); pend = []
            assert not pend
        seq(1, self.o_loads(1))
        for n, (st, T) in enumerate(steps):
            g = 8*n
            if n + 1 < N:
                w = f"s_waitcnt lgkmcnt({2*min(PD-1, N-2-n)})"
                st2 = steps[n+1][0]
                if n + 1 in (30, 60, 90): w = (f"s_WAITVM og{(n+1)//30}", w)
                add(g+7, w)
            if n + PD < N:
                m = n + PD
                if m % 10 == 0 and m <= 90:
                    sn = m // 10
                    tg = f"t{sn}" if sn < 9 else "t9,t10,t11"
                    if sn == 2: tg += ",u"
                    add(g, [f"s_WAITVM {tg}", "s_barrier"])
                    add(g+1, rd(m))
                    if sn == 2: add(g+2, self.set_flag(F_U))
                    if sn >= 2: seq(g+3, self.titem(sn+4))
                else:
                    add(g, rd(m))
            if n == 30: seq(g+2, self.o_loads(2))
            if n == 45:
                q.append((g, ("v_and_b32 v12, 31, v0", "v_lshlrev_b32 v12, 2, v12", f"s_lshl_b32 {s(sT1)}, {s(sQt)}, 7",
                              f"s_add_u32 {s(sT1)}, {s(sT1)}, {F_U*1024}", f"v_add_u32 v12, {s(sT1)}, v12")))
                q.append((g, self.poll_issue(13, 12, "pu")))
            if n == 60: seq(g+2, self.o_loads(3))
            if n == 72:
                q.append((g, self.poll_check(13, 12, "pu"))); seq(g, self.u_loads(0, 16))
            if n == 90: seq(g+2, self.u_loads(16, 40))
            if n == 94:
                add(g+2, "s_barrier"); seq(g+3, self.titem(14))
            if n >= 90 and st == 11:
                hf, j = divmod(T, 5)
                e = g + 8 + 5
                for qb in range(4):
                    tb = 48 + qb*12
                    x = ACC + (T*4+qb)*4
                    q.append((e, f"v_cvt_pk_bf16_f32 {v(tb+2*j)}, {v(x)}, {v(x+1)}"))
                    q.append((e, f"v_cvt_pk_bf16_f32 {v(tb+2*j+1)}, {v(x+2)}, {v(x+3)}"))
                if j in (1, 3, 4):
                    for qb in range(4):
                        tb = 48 + qb*12
                        so = f"s_add_u32 {s(sT0)}, {s(sRb)}, {hf*8*10240 + qb*2560}"
                        if j < 4: x = f"buffer_store_dwordx4 {v(tb+2*(j-1),4)}, v9, {s(sE,4)}, {s(sT0)} offen offset:{(j//2)*1024} sc1 ;#pt"
                        else: x = f"buffer_store_dwordx2 {v(tb+8,2)}, v8, {s(sE,4)}, {s(sT0)} offen offset:2048 sc1 ;#pt"
                        q.append((e, (so, x)))
        A(f"s_waitcnt lgkmcnt({2*(PD-1)})")
        fill, left = greedy(mf, q, fill)
        A(weave(mf, fill))
        self.oleft = left

    def p4(self):
        A, name = self.A, self.name
        ACC2, RING, R, PD = 196, 16, 4, 3
        R = 4
        N = 120
        def rd(n):
            kp, j = divmod(n, 5)
            o = []
            for u in range(2):
                ks = 2*kp+u
                o.append(f"ds_read_b128 {v(RING + 8*(n % R) + 4*u, 4)}, {self.lds_lin(self.SEQ[(12 + ks//4) % 6], ((ks%4)*5+j)*1024)}")
            return o
        A(["s_WAITVM t12,u0", "s_barrier"])
        A(self.stamp("oproj"))
        for n in range(PD): A(rd(n))
        for x in self.oleft: A(list(x) if isinstance(x, tuple) else x)
        A(self.titem(15)); A(self.titem(16)); A(self.titem(17)); A(self.u_loads(40, 48))
        RES = 216
        A([f"s_mul_i32 {s(sT0)}, {s(sRbP)}, 20480", f"s_add_u32 {s(sT0)}, {s(sT0)}, {WS_X1}"])
        for j in range(5):
            A(tile_off(sT1, sVo, j, sT0)); A(f"buffer_load_dwordx2 {v(RES+2*j,2)}, v9, {s(sE,4)}, {s(sT1)} offen sc1 ;#res")
        A([f"s_mul_i32 {s(sT0)}, {s(sRbP)}, {16*1280}", f"s_mul_i32 {s(sT1)}, {s(sVo)}, 160", f"s_add_u32 {s(sT0)}, {s(sT0)}, {s(sT1)}"])
        A(srd(sA, pX, sT0, 0, 15*1280+160)); A(srd(sB, pOut, sT0, 0, 15*1280+160))
        A(["v_and_b32 v14, 15, v0", "v_mul_u32_u24 v7, 1280, v14", "v_lshrrev_b32 v15, 4, v0", "v_lshl_add_u32 v7, v15, 3, v7"])
        for j in range(5): A(f"buffer_load_dwordx2 {v(RES+10+2*j,2)}, v7, {s(sA,4)}, 0 offen offset:{j*32} ;#res")
        issued = 18
        for n in range(N):
            kp, j = divmod(n, 5)
            A(f"s_waitcnt lgkmcnt({2*min(PD-1, N-1-n)})")
            nx = []
            if n + PD < N:
                m = n + PD
                if m % 10 == 0:
                    r = m // 10
                    tg = f"t{12+r},u{r}"
                    if r == 3: tg += ",pt"
                    A([f"s_WAITVM {tg}", "s_barrier"])
                    if r == 3: A(list(self.set_flag(F_PT)))
                    if r >= 2 and issued < 24:
                        A(self.titem(issued)); issued += 1
                nx = rd(m)
            for u in range(2):
                ks = 2*kp+u
                A(mfma(v(ACC2+4*j, 4), v(RING + 8*(n % R) + 4*u, 4), self.Uf(ks), "0" if ks == 0 else None))
            A(nx)
        assert issued == 24
        A(self.stamp("P4 gemm"))
        A(["v_and_b32 v12, 7, v0", "v_lshlrev_b32 v12, 4, v12", f"s_lshl_b32 {s(sT1)}, {s(sQt)}, 7", f"s_lshl_b32 {s(sT2)}, {s(sH4)}, 2",
           f"s_add_u32 {s(sT1)}, {s(sT1)}, {s(sT2)}", f"s_add_u32 {s(sT1)}, {s(sT1)}, {F_PT*1024}", f"v_add_u32 v12, {s(sT1)}, v12"])
        A(self.poll_issue(13, 12, "pp"))
        T = 48
        for j in range(10): A([f"v_lshlrev_b32 {v(T+2*j)}, 16, {v(RES+j)}", f"v_and_b32 {v(T+2*j+1)}, 0xffff0000, {v(RES+j)}"])
        for r in range(10): A(f"v_pk_add_f32 {v(ACC2+2*r,2)}, {v(ACC2+2*r,2)}, {v(T+2*r,2)}")
        for r in range(20): A(f"v_mul_f32 {v(T+r)}, {fx(-math.log2(math.e))}, {v(ACC2+r)}")
        for r in range(20): A(f"v_exp_f32 {v(T+r)}, {v(T+r)}")
        A(list(self.poll_check(13, 12, "pp")))
        A(self.stamp("PT ok"))
        PT = 96
        A([f"s_add_u32 {s(sT0)}, {s(sRc)}, {s(sX8)}", f"s_mul_i32 {s(sT0)}, {s(sT0)}, {8*10240}", f"s_mul_i32 {s(sT1)}, {s(sWv)}, 2560",
           f"s_add_u32 {s(sT0)}, {s(sT0)}, {s(sT1)}", f"s_add_u32 {s(sT0)}, {s(sT0)}, {WS_PART}"])
        for src in range(8):
            b = PT + 12*src
            A([f"buffer_load_dwordx4 {v(b,4)}, v9, {s(sE,4)}, {s(sT0)} offen sc1 ;#pl{src}",
               f"buffer_load_dwordx4 {v(b+4,4)}, v9, {s(sE,4)}, {s(sT0)} offen offset:1024 sc1 ;#pl{src}",
               f"buffer_load_dwordx2 {v(b+8,2)}, v8, {s(sE,4)}, {s(sT0)} offen offset:2048 sc1 ;#pl{src}"])
            if src < 7: A(f"s_add_u32 {s(sT0)}, {s(sT0)}, 10240")
        for r in range(20): A(f"v_add_f32 {v(T+r)}, 1.0, {v(T+r)}")
        for r in range(20): A(f"v_rcp_f32 {v(T+r)}, {v(T+r)}")
        for r in range(20): A(f"v_mul_f32 {v(ACC2+r)}, {v(ACC2+r)}, {v(T+r)}")
        for j in range(10): A([f"v_lshlrev_b32 {v(T+2*j)}, 16, {v(RES+10+j)}", f"v_and_b32 {v(T+2*j+1)}, 0xffff0000, {v(RES+10+j)}"])
        SUM, U2 = 16, 68
        for src in range(8):
            b = PT + 12*src
            A(f"s_WAITVM pl{src}")
            d = SUM if src == 0 else U2
            for j in range(10): A([f"v_lshlrev_b32 {v(d+2*j)}, 16, {v(b+j)}", f"v_and_b32 {v(d+2*j+1)}, 0xffff0000, {v(b+j)}"])
            if src:
                for r in range(10): A(f"v_pk_add_f32 {v(SUM+2*r,2)}, {v(SUM+2*r,2)}, {v(U2+2*r,2)}")
        for r in range(10): A(f"v_pk_fma_f32 {v(T+2*r,2)}, {v(SUM+2*r,2)}, {v(ACC2+2*r,2)}, {v(T+2*r,2)}")
        for j in range(10): A(f"v_cvt_pk_bf16_f32 {v(RES+j)}, {v(T+2*j)}, {v(T+2*j+1)}")
        for j in range(5): A(f"buffer_store_dwordx2 {v(RES+2*j,2)}, v7, {s(sB,4)}, 0 offen offset:{j*32}")
        A(self.stamp("final"))

    def gen(self):
        A, name = self.A, self.name
        A(".p2align 8"); A(f".type {name},@function"); A.label(name)
        self.s0(); self.p1(); self.qproj(); self.p2(); self.attn(); self.p3(); self.oproj(); self.p4()
        A.label(f"{name}_end"); A("s_endpgm")
        A.label(f"{name}_hot_end")
        A(self.ool)
        L = resolve_vm(A.L)
        L, n = fix_hazards(L, name)
        A.L = L
        return A

if __name__ == "__main__":
    m = Mega("mega_kernel", diag=True); A = m.gen(); print(len(A.L), m.stnames)
```

```python
import sys
from asmlib import *
from layout import *
import mega

HDR = open("recurrent_scan__mha_block_cached__mixer_s_mlp__prompt.s.ref").read().split("; Override launch")[0]

def build(kernels, path):
    out = HDR
    for k in kernels:
        out += f"; @launch kernel={k[0]} grid=({k[2]},1,1) block=({k[3]},1,1) lds={k[4]}\n"
    out += '.amdgcn_target "amdgcn-amd-amdhsa--gfx950"\n.text\n'
    seen = set()
    for k in kernels:
        if k[0] in seen: continue
        seen.add(k[0])
        out += f".globl {k[0]}\n" + k[1].text()
    out += '.section .rodata,"a"\n'
    seen = set()
    for k in kernels:
        if k[0] in seen: continue
        seen.add(k[0])
        out += kdesc(k[0], k[5], k[6])
    open(path, "w").write(out)

NAME = "recurrent_scan__mha_block_cached__mixer_s_mlp__prompt"
def build_single(path, diag=False, opts=None, as_list=False):
    name = NAME + "_kernel"
    m = mega.Mega(name, diag=diag, opts=opts); A = m.gen()
    out = HDR
    if as_list: out += f"; @launch kernel={name} grid=(256,1,1) block=(256,1,1) lds=163840\n"
    else: out += f"; @launch grid=(256,1,1) block=(256,1,1) lds=163840\n"
    if diag: out += "; stamps: " + "|".join(m.stnames) + "\n"
    out += '.amdgcn_target "amdgcn-amd-amdhsa--gfx950"\n.text\n' + f".globl {name}\n" + A.text()
    out += '.section .rodata,"a"\n' + kdesc(name, 512, 256)
    open(path, "w").write(out)

if __name__ == "__main__":
    build_single(f"cdna_kernels/{NAME}.s")
    build_single("m.s", as_list=True)
    build_single("m_diag.s", diag=True, as_list=True)
```
